```python
import torch

def _softmax(x, axis=-1):
    return torch.softmax(x, dim=axis)

def _gelu(x):
    return torch.nn.functional.gelu(x, approximate='tanh')

def _silu(x):
    return torch.nn.functional.silu(x)

def _sigmoid(x):
    return torch.sigmoid(x)

def _layernorm(x, axis=-1, eps=1e-05):
    m = x.mean(dim=axis, keepdim=True)
    v = x.var(dim=axis, keepdim=True, unbiased=False)
    return (x - m) / torch.sqrt(v + eps)

def _scatter_add(tgt, idx, src, axis=0):
    return tgt.clone().index_add_(axis, idx, src)

def _segment_sum(src, seg, n):
    out = torch.zeros((n,) + src.shape[1:], dtype=src.dtype)
    return out.index_add_(0, seg, src)

def _pad(x, pw):
    flat = tuple((v for pair in reversed(pw) for v in pair))
    return torch.nn.functional.pad(x, flat)
kernel_name = 'adaLN_cond__ssm_conv_s4__mixer_gmlp__prompt'

def setup_inputs():

    _w = lambda a: (lambda t: t.to(torch.bfloat16) if t.is_floating_point() else t)(torch.as_tensor(a))

    def _A_setup():
        B, L, D, N = (1, 2048, 512, 128)
        A_re = -(lambda _x: torch.exp(torch.as_tensor(_x)))((lambda *s: torch.randn(*s, dtype=torch.bfloat16) * 3.2)(D, N))
        A_im = torch.pi * (lambda *s: torch.randn(*s, dtype=torch.bfloat16) * 0.2)(D, N)
        B_re = (lambda *s: torch.randn(*s, dtype=torch.bfloat16) * 0.2)(D, N)
        B_im = (lambda *s: torch.randn(*s, dtype=torch.bfloat16) * 0.2)(D, N)
        C_re = (lambda *s: torch.randn(*s, dtype=torch.bfloat16) * 0.2)(D, N)
        C_im = (lambda *s: torch.randn(*s, dtype=torch.bfloat16) * 0.2)(D, N)
        log_dt = (lambda *s: torch.randn(*s, dtype=torch.bfloat16) * 0.2)(D) * 0.5 - 4.0
        Dskip = (lambda *s: torch.randn(*s, dtype=torch.bfloat16) * 0.2)(D)
        return {'u': _w((lambda *s: torch.randn(*s, dtype=torch.bfloat16) * 0.05)(B, L, D)), 'A_re': _w(A_re), 'A_im': _w(A_im), 'B_re': _w(B_re), 'B_im': _w(B_im), 'C_re': _w(C_re), 'C_im': _w(C_im), 'log_dt': _w(log_dt), 'Dskip': _w(Dskip)}
    _A_in = _A_setup()

    def _B_setup():
        B, S, D, F = (1, 2048, 512, 1792)
        Fh = F // 2
        return {'x': _w((lambda *s: torch.randn(*s, dtype=torch.bfloat16) * 0.05)(B, S, D)), 'w_in': _w((lambda *s: torch.randn(*s, dtype=torch.bfloat16) * 0.2)(D, 2 * Fh)), 'w_sp': _w(0.01 * (lambda *s: torch.randn(*s, dtype=torch.bfloat16) * 0.2)(S, S)), 'b_sp': _w(1.0 + 0.01 * (lambda *s: torch.randn(*s, dtype=torch.bfloat16) * 0.05)(S)), 'w_out': _w((lambda *s: torch.randn(*s, dtype=torch.bfloat16) * 0.05)(Fh, D))}
    _B_in = _B_setup()
    return {'A_u': _A_in['u'], 'A_A_re': _A_in['A_re'], 'A_A_im': _A_in['A_im'], 'A_B_re': _A_in['B_re'], 'A_B_im': _A_in['B_im'], 'A_C_re': _A_in['C_re'], 'A_C_im': _A_in['C_im'], 'A_log_dt': _A_in['log_dt'], 'A_Dskip': _A_in['Dskip'], 'B_x': _B_in['x'], 'B_w_in': _B_in['w_in'], 'B_w_sp': _B_in['w_sp'], 'B_b_sp': _B_in['b_sp'], 'B_w_out': _B_in['w_out'], 'c': _w((lambda *s: torch.randn(*s, dtype=torch.bfloat16) * 0.1)(1, 512) * 8.0), 'w_mod': _w((lambda *s: torch.randn(*s, dtype=torch.bfloat16) * 0.1)(512, 6 * 512) * 512 ** (-0.5) * 8.0)}

def reference(A_u, A_A_re, A_A_im, A_B_re, A_B_im, A_C_re, A_C_im, A_log_dt, A_Dskip, B_x, B_w_in, B_w_sp, B_b_sp, B_w_out, c, w_mod):

    def _A_ref(u, A_re, A_im, B_re, B_im, C_re, C_im, log_dt, Dskip):
        Bsz, L, D = u.shape
        dt = torch.exp(log_dt)[:, None]
        A = A_re + 1j * A_im
        Bc = B_re + 1j * B_im
        Cc = C_re + 1j * C_im
        logdA = dt * A
        dB = dt * Bc
        l = (lambda x, dt: x.to(dt))(torch.arange(L), A_re.dtype)
        P = torch.exp(logdA[:, :, None] * l[None, None, :])
        K = torch.einsum('dn,dnl,dn->dl', Cc, P, dB).real
        L2 = 2 * L
        Kp = _pad(K, ((0, 0), (0, L)))
        up = (lambda x, *d: x.permute(*d))(u, 0, 2, 1)
        up = _pad(up, ((0, 0), (0, 0), (0, L)))
        Kf = (lambda x, axes=(-2, -1): torch.fft.rfft2(x.float(), dim=axes))(Kp[:, None, :], axes=(-2, -1))
        Uf = (lambda x, axes=(-2, -1): torch.fft.rfft2(x.float(), dim=axes))(up[:, :, None, :], axes=(-2, -1))
        Yf = Uf * Kf[None, :, :, :]
        y = (lambda x, s, axes=(-2, -1): torch.fft.irfft2(x, s=s, dim=axes).to(torch.bfloat16))(Yf, (1, L2), axes=(-2, -1))[:, :, 0, :L]
        y = (lambda x, *d: x.permute(*d))(y, 0, 2, 1) + u * Dskip[None, None, :]
        return y

    def _B_ref(x, w_in, w_sp, b_sp, w_out):
        B, S, D = x.shape
        F = w_in.shape[-1]
        Fh = F // 2
        z = _gelu(torch.einsum('bsd,df->bsf', x, w_in))
        z1 = z[..., :Fh].clone()
        z2 = _layernorm(z[..., Fh:], axis=-1)
        g = torch.einsum('ts,bsf->btf', w_sp, z2) + b_sp[None, :, None]
        return torch.einsum('bsf,fd->bsd', z1 * g, w_out)
    x = A_u
    mod = (_silu(c) @ w_mod).reshape(c.shape[0], 6, 1, -1)
    sa, ca, ga, sb, cb, gb = (mod[:, 0].clone(), mod[:, 1].clone(), mod[:, 2].clone(), mod[:, 3].clone(), mod[:, 4].clone(), mod[:, 5].clone())
    h = _layernorm(x, axis=-1) * (1 + ca) + sa
    x = x + ga * _A_ref(h, A_A_re, A_A_im, A_B_re, A_B_im, A_C_re, A_C_im, A_log_dt, A_Dskip)
    h = _layernorm(x, axis=-1) * (1 + cb) + sb
    x = x + gb * _B_ref(h, B_w_in, B_w_sp, B_b_sp, B_w_out)
    return x
```

```python
import re

def v(i, n=1): return f'v{i}' if n == 1 else f'v[{i}:{i+n-1}]'
def a(i, n=1): return f'a{i}' if n == 1 else f'a[{i}:{i+n-1}]'
def s(i, n=1): return f's{i}' if n == 1 else f's[{i}:{i+n-1}]'

_REG = re.compile(r'(?<![\w.])(-?)(?:abs\()?([vas])(?:(\d+)|\[(\d+):(\d+)(?:\+(\d+))?\])')

def regs_of(op):
    out = set()
    op = op.strip()
    if op in ('vcc', 'vcc_lo', 'vcc_hi'): return {('s', 'vcc')}
    if op in ('exec', 'exec_lo', 'exec_hi'): return {('s', 'exec')}
    if op == 'm0': return {('s', 'm0')}
    m = re.fullmatch(r'-?(?:abs\()?([vas])(\d+)\)?', op)
    if m: return {(m.group(1), int(m.group(2)))}
    m = re.fullmatch(r'-?(?:abs\()?([vas])\[(\d+):(\d+)\]\)?', op)
    if m: return {(m.group(1), i) for i in range(int(m.group(2)), int(m.group(3)) + 1)}
    return out

TRANS = ('v_exp_f32', 'v_log_f32', 'v_rcp_f32', 'v_rsq_f32', 'v_sqrt_f32', 'v_sin_f32', 'v_cos_f32', 'v_rcp_iflag_f32')

class Ins:
    __slots__ = ('text', 'mn', 'dst', 'src', 'kind', 'passes', 'srcC', 'dpp', 'sdwa', 'wide_store', 'lds_dma')

def parse(text):
    t = text.split(';')[0].strip()
    I = Ins(); I.text = text
    parts = t.split(None, 1)
    mn = parts[0]; I.mn = mn
    rest = parts[1] if len(parts) > 1 else ''
    ops = []; depth = 0; cur = ''
    for ch in rest:
        if ch == '[': depth += 1
        if ch == ']': depth -= 1
        if ch == ',' and depth == 0:
            ops.append(cur.strip()); cur = ''
        else: cur += ch
    if cur.strip(): ops.append(cur.strip())
    mods = ''
    if ops:
        sp = ops[-1].split(None, 1)
        ops[-1] = sp[0]
        mods = sp[1] if len(sp) > 1 else ''
    I.dst = set(); I.src = set(); I.srcC = set(); I.passes = 0
    I.dpp = ('_dpp' in mn) or ('row_' in mods) or ('quad_perm' in mods)
    I.sdwa = '_sdwa' in mn
    I.wide_store = False; I.lds_dma = False
    R = [regs_of(o) for o in ops]
    allr = lambda lst: set().union(*lst) if lst else set()
    if mn.startswith('v_mfma'):
        I.kind = 'mfma'
        I.dst = R[0]; I.src = R[1] | R[2] | R[3]; I.srcC = R[3]
        I.passes = 8 if '32x32' in mn else 4
        if '16x16x4_f32' in mn: I.passes = 8
    elif mn.startswith('v_cmp'):
        I.kind = 'valu'; I.dst = R[0]; I.src = allr(R[1:])
        if mn.startswith('v_cmpx'): I.dst |= {('s', 'exec')}
    elif mn.startswith('v_readfirstlane') or mn.startswith('v_readlane'):
        I.kind = 'valu'; I.dst = R[0]; I.src = allr(R[1:])
    elif mn.startswith('v_permlane') and 'swap' in mn:
        I.kind = 'valu'; I.dst = R[0] | R[1]; I.src = R[0] | R[1]
    elif mn.startswith('v_'):
        I.kind = 'valu'; I.dst = set(R[0]); I.src = allr(R[1:])
        if '_co_' in mn:
            I.dst |= R[1]; I.src = allr(R[2:])
        if mn.startswith(('v_fmac', 'v_dot2c', 'v_pk_fmac', 'v_mac')) or I.dpp or I.sdwa or mn.startswith('v_writelane'):
            I.src |= R[0]
        if mn.startswith('v_cndmask') and len(ops) == 3: I.src |= {('s', 'vcc')}
    elif mn.startswith(('buffer_', 'global_', 'flat_')):
        I.kind = 'vmem'
        lds = ' lds' in (' ' + mods) or any(o == 'lds' for o in mods.split())
        if 'load' in mn and not lds:
            I.dst = R[0]; I.src = allr(R[1:])
        elif 'load' in mn and lds:
            I.lds_dma = True; I.src = allr(R) | {('s', 'm0')}
        elif 'store' in mn or 'atomic' in mn:
            I.src = allr(R)
            if 'dwordx4' in mn or 'dwordx3' in mn:
                I.wide_store = True
                I.srcC = R[0] if mn.startswith('buffer_') else R[1]
        else:
            I.src = allr(R)
    elif mn.startswith('ds_'):
        I.kind = 'ds'
        if 'read' in mn or 'bpermute' in mn or 'permute' in mn or 'swizzle' in mn:
            I.dst = R[0]; I.src = allr(R[1:])
        else:
            I.src = allr(R)
    elif mn.startswith('s_'):
        I.kind = 'salu'
        if mn.startswith(('s_cmp', 's_cbranch', 's_branch', 's_waitcnt', 's_barrier', 's_nop', 's_endpgm', 's_setprio', 's_sleep', 's_bitcmp')):
            I.src = allr(R)
        else:
            I.dst = R[0] if R else set(); I.src = allr(R[1:])
            if 'saveexec' in mn: I.dst |= {('s', 'exec')}
    else:
        raise ValueError('unknown instr: ' + text)
    return I

def states(I):
    if I.mn == 's_nop':
        return int(I.text.split()[1].rstrip(';'), 0) + 1
    return 1

def need(prev, cur):
    n = 0
    pv = {r for r in prev.dst if r[0] in 'va'}
    ps = {r for r in prev.dst if r[0] == 's'}
    if prev.kind == 'valu':
        if cur.kind == 'mfma' and pv & cur.src: n = max(n, 2)
        if cur.kind == 'valu':
            if cur.dpp and pv & cur.src: n = max(n, 2)
            if cur.mn.startswith('v_permlane') and pv & cur.src: n = max(n, 2)
            if cur.mn.startswith(('v_readlane', 'v_readfirstlane')) and pv & cur.src: n = max(n, 1)
            if prev.mn.split('_e')[0] in TRANS or prev.mn in TRANS:
                if pv & cur.src and not (cur.mn in TRANS): n = max(n, 1)
                if pv & cur.src: n = max(n, 1)
            if (prev.sdwa) and pv & (cur.src | cur.dst): n = max(n, 1)
            if ps & cur.src:
                n = max(n, 4 if cur.mn.startswith(('v_readlane', 'v_writelane')) else 2)
            if ('s', 'exec') in ps and cur.dpp: n = max(n, 5)
        if cur.kind == 'vmem' and ps & cur.src: n = max(n, 5)
        if cur.kind == 'mfma' and ('s', 'exec') in ps: n = max(n, 4)
    if prev.kind == 'mfma':
        P = prev.passes
        if cur.kind == 'mfma':
            if pv & cur.srcC:
                if not (cur.srcC == prev.dst and cur.passes == P): n = max(n, {4: 6, 8: 10}[P])
            ab = cur.src - cur.srcC
            if pv & ab: n = max(n, {4: 8, 8: 12}[P])
            if pv & cur.dst and not (pv & cur.srcC): n = max(n, {4: 8, 8: 12}[P])
        elif cur.kind in ('valu', 'vmem', 'ds'):
            if pv & (cur.src | cur.dst): n = max(n, {4: 8, 8: 12}[P])
        if cur.kind == 'valu' and prev.srcC & cur.dst: n = max(n, {4: 3, 8: 7}[P])
    if prev.kind == 'salu':
        if ('s', 'm0') in ps and (cur.lds_dma or cur.mn.startswith('s_sendmsg')): n = max(n, 1)
    if prev.kind == 'vmem' and prev.wide_store:
        if cur.kind == 'valu' and prev.srcC & cur.dst: n = max(n, 2)
        elif prev.srcC & cur.dst: n = max(n, 1)
    return n

class Asm:
    def __init__(self, auto=True):
        self.L = []
        self.uid = 0
        self.auto = auto
        self.hist = []
        self.count = 0
    def _emit(self, ln):
        self.L.append('  ' + ln)
    def __call__(self, txt):
        for ln in txt.strip('\n').split('\n'):
            ln = ln.strip()
            if not ln or ln.startswith(';'):
                self.L.append('  ' + ln); continue
            if not self.auto:
                self._emit(ln); continue
            I = parse(ln)
            req = 0
            for (p, d) in self.hist:
                k = need(p, I) - d
                if k > req: req = k
            while req > 0:
                n = min(req, 16)
                self._emit(f's_nop {n-1}')
                for h in self.hist: h[1] += n
                req -= n
            self._emit(ln)
            st = states(I)
            for h in self.hist: h[1] += st
            self.hist.append([I, 0])
            self.hist = [h for h in self.hist if h[1] < 20]
            self.count += 1
    def label(self, name, flush=True):
        self.L.append(name + ':')
    def pad(self, n):
        while n > 0:
            k = min(n, 16); self(f's_nop {k-1}'); n -= k
    def newlabel(self, base='L'):
        self.uid += 1
        return f'{base}_{self.uid}'
    def text(self):
        return '\n'.join(self.L) + '\n'

def kernel_header(name):
    return f'.globl {name}\n.p2align 8\n.type {name},@function\n{name}:\n'

def kernel_desc(name, vgpr, sgpr=102, accum=None, total=None):
    acc = accum if accum is not None else ((vgpr + 3) // 4 * 4)
    tot = total if total is not None else vgpr
    return f'''.p2align 6
.amdhsa_kernel {name}
  .amdhsa_next_free_vgpr {tot}
  .amdhsa_next_free_sgpr {sgpr}
  .amdhsa_accum_offset {acc}
  .amdhsa_group_segment_fixed_size 0
  .amdhsa_kernarg_size 152
  .amdhsa_user_sgpr_count 2
  .amdhsa_user_sgpr_kernarg_segment_ptr 1
  .amdhsa_system_sgpr_workgroup_id_x 1
.end_amdhsa_kernel
'''

def assemble_file(kernels, header=''):
    out = header
    for k in kernels:
        out += f"; @launch kernel={k['name']} grid=({k['grid']},1,1) block=({k['block']},1,1) lds={k['lds']}\n"
    out += '.amdgcn_target "amdgcn-amd-amdhsa--gfx950"\n.text\n'
    seen = []
    for k in kernels:
        if k['name'] in seen: continue
        seen.append(k['name'])
        out += kernel_header(k['name']) + k['body'] + '\n'
    out += '.section .rodata,"a"\n'
    seen = []
    for k in kernels:
        if k['name'] in seen: continue
        seen.append(k['name'])
        out += kernel_desc(k['name'], k['vgpr'], k.get('sgpr', 102), k.get('accum'), k.get('total'))
    return out
```

```python
import sys, struct
sys.path.insert(0, 'work')
from asmgen import *

NAME = 'adaLN_cond__ssm_conv_s4__mixer_gmlp__prompt'

KA = dict(u=0, are=8, aim=16, bre=24, bim=32, cre=40, cim=48, logdt=56, dskip=64, bx=72, win=80, wsp=88, bsp=96,
          wout=104, c=112, wmod=120, out=128, dbg=136, ws=144)
WS_MOD = 0x0
WS_STAT1 = 0x4000
WS_STAT2 = 0x8000
WS_U = 0xC000
WS_V = 0xE000
WS_XB = 0x100000
RG_PITCH = 4160
WS_RG = 0x400000
WS_X1T = 0x900000
WS_WP = 0xC00000
WS_WO = 0xE00000
WS_Z1 = 0x1000000
WS_Z2 = 0x1400000
WS_P = 0x1800000

def f32(x):
    return '0x%08x' % struct.unpack('<I', struct.pack('<f', x))[0]
LOG2E = 1.4426950408889634
INV2PI = 0.15915494309189535

def load_ptr(A, dst, name):
    A(f's_load_dwordx2 {s(dst,2)}, s[0:1], {KA[name]}')

def srd(A, dst, base, off, size):
    if off == 0:
        A(f's_mov_b32 {s(dst)}, {s(base)}')
        A(f's_mov_b32 {s(dst+1)}, {s(base+1)}')
    else:
        A(f's_add_u32 {s(dst)}, {s(base)}, {off}')
        A(f's_addc_u32 {s(dst+1)}, {s(base+1)}, 0')
    A(f's_mov_b32 {s(dst+2)}, {size}')
    A(f's_mov_b32 {s(dst+3)}, 0x20000')

def wave_id(A, sdst, vtmp):
    A(f'v_lshrrev_b32 {v(vtmp)}, 6, v0')
    A(f'v_readfirstlane_b32 {s(sdst)}, {v(vtmp)}')

def unpack_lo(A, d, src): A(f'v_lshlrev_b32 {v(d)}, 16, {v(src)}')
def unpack_hi(A, d, src): A(f'v_and_b32 {v(d)}, 0xffff0000, {v(src)}')

K1_A0, K1_NA = 0, 64
K1_C0, K1_NC = 64, 512
K1_B0, K1_NB = 576, 96
K1_D0, K1_ND = 672, 28
K1_E0 = 700
K1_GRID = 701

def k1_roleA(A):
    load_ptr(A, 4, 'u'); load_ptr(A, 6, 'ws')
    wave_id(A, 8, 1)
    A('v_and_b32 v1, 63, v0')
    A('v_lshlrev_b32 v2, 4, v1')
    A('v_add_u32 v3, 4096, v2')
    A('s_lshl_b32 s9, s2, 2'); A('s_add_u32 s9, s9, s8')
    A('s_lshl_b32 s10, s9, 13')
    A('s_waitcnt lgkmcnt(0)')
    srd(A, 12, 4, 0, 2048*1024)
    srd(A, 16, 6, WS_XB, 2048*1024)
    srd(A, 20, 6, WS_STAT1, 2048*8)
    X = 8
    for i in range(8):
        A(f'buffer_load_dwordx4 {v(X+4*i,4)}, {v(2 if i < 4 else 3)}, s[12:15], s10 offen offset:{(i%4)*1024}')
    A('s_mov_b32 s24, 0x3f803f80')
    A('s_mov_b32 s25, 0x05040100'); A('s_mov_b32 s26, 0x07060302')
    S = 40
    for i in range(8):
        A(f's_waitcnt vmcnt({7-i})')
        A(f'v_mov_b32 {v(S+i)}, 0'); A(f'v_mov_b32 {v(S+8+i)}, 0')
        for j in range(4):
            A(f'v_dot2_f32_bf16 {v(S+i)}, {v(X+4*i+j)}, s24, {v(S+i)}')
            A(f'v_dot2_f32_bf16 {v(S+8+i)}, {v(X+4*i+j)}, {v(X+4*i+j)}, {v(S+8+i)}')
    T = 64
    for j in range(8):
        for k in range(4):
            A(f'v_perm_b32 {v(T+4*j+k)}, {v(X+4*(2*k+1)+(j>>1))}, {v(X+4*(2*k)+(j>>1))}, {"s26" if j&1 else "s25"}')
        A(f'buffer_store_dwordx4 {v(T+4*j,4)}, {v(2 if j < 4 else 3)}, s[16:19], s10 offen offset:{(j%4)*1024}')
    for i in range(8):
        A(f'v_permlane32_swap_b32 {v(S+i)}, {v(S+8+i)}')
    for i in range(8):
        A(f'v_add_f32 {v(S+i)}, {v(S+i)}, {v(S+8+i)}')
    for i in range(4):
        A(f'v_permlane16_swap_b32 {v(S+i)}, {v(S+4+i)}')
    for i in range(4):
        A(f'v_add_f32 {v(S+i)}, {v(S+i)}, {v(S+4+i)}')
    for sh in (8, 4, 2, 1):
        for i in range(4):
            A(f'v_add_f32_dpp {v(S+i)}, {v(S+i)}, {v(S+i)} row_ror:{sh} row_mask:0xf bank_mask:0xf')
    for i in range(4):
        A(f'v_mov_b32 {v(S+4+i)}, {v(S+i)}')
    for i in range(4):
        A(f'v_permlane32_swap_b32 {v(S+i)}, {v(S+4+i)}')
    A(f's_mov_b32 s27, {f32(1.0/512)}')
    A(f's_mov_b32 s28, {f32(1e-5)}')
    for i in range(4):
        m, q, r0 = S+i, S+4+i, S+8+2*i
        A(f'v_mul_f32 {v(m)}, s27, {v(m)}')
        A(f'v_mul_f32 {v(q)}, s27, {v(q)}')
        A(f'v_fma_f32 {v(q)}, -{v(m)}, {v(m)}, {v(q)}')
        A(f'v_max_f32 {v(q)}, 0, {v(q)}')
        A(f'v_add_f32 {v(q)}, s28, {v(q)}')
        A(f'v_rsq_f32 {v(r0)}, {v(q)}')
        A(f'v_mul_f32 {v(r0+1)}, {v(m)}, {v(r0)}')
    A('v_lshrrev_b32 v4, 4, v1'); A('v_lshlrev_b32 v4, 5, v4')
    A('s_lshl_b32 s11, s9, 6')
    A('s_mov_b64 exec, 0x10001')
    for i in range(4):
        A(f'buffer_store_dwordx2 {v(S+8+2*i,2)}, v4, s[20:23], s11 offen offset:{8*i}')
    A('s_endpgm')

def k1_roleB(A):
    load_ptr(A, 4, 'wmod'); load_ptr(A, 6, 'ws'); load_ptr(A, 10, 'c')
    A(f's_sub_u32 s3, s2, {K1_B0}')
    A('v_and_b32 v1, 3, v0')
    A('v_lshrrev_b32 v2, 2, v0')
    A('v_lshlrev_b32 v3, 4, v2')
    A('s_mov_b32 s9, 49152'); A('v_mul_lo_u32 v4, v2, s9')
    A('v_lshl_add_u32 v4, v1, 4, v4')
    A('s_lshl_b32 s9, s3, 6')
    A('s_waitcnt lgkmcnt(0)')
    srd(A, 12, 4, 0, 512*6144)
    srd(A, 16, 10, 0, 1024)
    srd(A, 20, 6, WS_MOD, 3072*4)
    A('buffer_load_dwordx4 v[8:11], v3, s[16:19], 0 offen')
    W = 16
    for i in range(8):
        A(f's_add_u32 s8, s9, {i*6144}')
        A(f'buffer_load_dwordx4 {v(W+4*i,4)}, v4, s[12:15], s8 offen')
    C = 48
    A('s_waitcnt vmcnt(8)')
    for j in range(4):
        unpack_lo(A, C+2*j, 8+j); unpack_hi(A, C+2*j+1, 8+j)
    A(f's_mov_b32 s24, {f32(-LOG2E)}')
    for j in range(8):
        A(f'v_mul_f32 {v(56+j)}, s24, {v(C+j)}')
    for j in range(8):
        A(f'v_exp_f32 {v(56+j)}, {v(56+j)}')
    for j in range(8):
        A(f'v_add_f32 {v(56+j)}, 1.0, {v(56+j)}')
    for j in range(8):
        A(f'v_rcp_f32 {v(56+j)}, {v(56+j)}')
    for j in range(8):
        A(f'v_mul_f32 {v(C+j)}, {v(C+j)}, {v(56+j)}')
    ACC = 64
    for j in range(8): A(f'v_mov_b32 {v(ACC+j)}, 0')
    for i in range(8):
        A(f's_waitcnt vmcnt({7-i})')
        for j in range(4):
            unpack_lo(A, 56, W+4*i+j); unpack_hi(A, 57, W+4*i+j)
            A(f'v_fmac_f32 {v(ACC+2*j)}, {v(C+i)}, v56')
            A(f'v_fmac_f32 {v(ACC+2*j+1)}, {v(C+i)}, v57')
    for sh in (4, 8):
        for j in range(8):
            A(f'v_add_f32_dpp {v(ACC+j)}, {v(ACC+j)}, {v(ACC+j)} row_ror:{sh} row_mask:0xf bank_mask:0xf')
    A('v_lshrrev_b32 v5, 4, v0'); A('v_lshlrev_b32 v5, 7, v5'); A('v_lshl_add_u32 v5, v1, 5, v5')
    A('v_and_b32 v6, 12, v0')
    A('v_cmp_eq_u32 vcc, 0, v6')
    A('s_and_saveexec_b64 s[26:27], vcc')
    A(f'ds_write_b128 v5, {v(ACC,4)}')
    A(f'ds_write_b128 v5, {v(ACC+4,4)} offset:16')
    A('s_mov_b64 exec, s[26:27]')
    A('s_waitcnt lgkmcnt(0)')
    A('s_barrier')
    A('v_cmp_gt_u32 vcc, 32, v0')
    A('s_and_saveexec_b64 s[26:27], vcc')
    lab = A.newlabel('K1B_done')
    A(f's_cbranch_execz {lab}')
    A('v_lshlrev_b32 v5, 2, v0')
    for p in range(16):
        A(f'ds_read_b32 {v(16+p)}, v5 offset:{p*128}')
    A('s_waitcnt lgkmcnt(0)')
    for p in range(1, 16):
        A(f'v_add_f32 v16, v16, {v(16+p)}')
    A('s_lshl_b32 s8, s3, 7')
    A('buffer_store_dword v16, v5, s[20:23], s8 offen')
    A.label(lab)
    A('s_endpgm')

def cmul(A, dr, di, ar, ai, br, bi, t=None):
    if t is not None:
        A(f'v_mul_f32 {v(t)}, {v(ai)}, {v(bi)}')
        A(f'v_mul_f32 {v(t+1)}, {v(ai)}, {v(br)}')
        A(f'v_fma_f32 {v(di)}, {v(ar)}, {v(bi)}, {v(t+1)}')
        A(f'v_fma_f32 {v(dr)}, {v(ar)}, {v(br)}, -{v(t)}')
    else:
        A(f'v_mul_f32 {v(dr)}, {v(ai)}, {v(bi)}')
        A(f'v_mul_f32 {v(di)}, {v(ai)}, {v(br)}')
        A(f'v_fma_f32 {v(dr)}, {v(ar)}, {v(br)}, -{v(dr)}')
        A(f'v_fma_f32 {v(di)}, {v(ar)}, {v(bi)}, {v(di)}')

def cexp(A, dr, di, zr2, zi2, mult, t):
    A(f'v_mul_f32 {v(t)}, {f32(mult)}, {v(zr2)}')
    A(f'v_mul_f32 {v(t+1)}, {f32(mult)}, {v(zi2)}')
    A(f'v_exp_f32 {v(t)}, {v(t)}')
    A(f'v_fract_f32 {v(t+1)}, {v(t+1)}')
    A(f'v_cos_f32 {v(dr)}, {v(t+1)}')
    A(f'v_sin_f32 {v(di)}, {v(t+1)}')
    A(f'v_mul_f32 {v(dr)}, {v(dr)}, {v(t)}')
    A(f'v_mul_f32 {v(di)}, {v(di)}, {v(t)}')

UP = 528
K1_LDS_VB = 32 * UP
K1_LDS_KL = 64 * UP
K1_LDS = K1_LDS_KL + 16 + 2 * 2064 + 32

def k1_roleC(A):
    A('s_load_dwordx16 s[8:23], s[0:1], 8')
    load_ptr(A, 6, 'ws')
    A(f's_sub_u32 s3, s2, {K1_C0}')
    wave_id(A, 4, 1)
    A('v_and_b32 v1, 127, v0')
    A('s_lshl_b32 s5, s3, 8')
    A('v_lshlrev_b32 v2, 1, v1')
    A('v_add_u32 v2, s5, v2')
    A('s_lshl_b32 s5, s3, 1')
    A('v_mov_b32 v3, s5')
    A('s_waitcnt lgkmcnt(0)')
    for j, r in enumerate((8, 9, 10, 11, 12, 13)):
        A(f'global_load_ushort {v(r)}, v2, {s(8+2*j,2)}')
    A(f'global_load_ushort v14, v3, s[20:21]')
    srd(A, 24, 6, WS_RG, 512*2*RG_PITCH)
    A('s_waitcnt vmcnt(0)')
    for r in (8, 9, 10, 11, 12, 13, 14):
        A(f'v_lshlrev_b32 {v(r)}, 16, {v(r)}')
    are, aim, bre, bim, cre, cim, ldt = 8, 9, 10, 11, 12, 13, 14
    A(f'v_mul_f32 v14, {f32(LOG2E)}, v14')
    A('v_exp_f32 v14, v14')
    A('v_cvt_pk_bf16_f32 v14, v14, v14')
    A('v_and_b32 v14, 0xffff0000, v14')
    zr2, zi2 = 16, 17
    A(f'v_mul_f32 {v(zr2)}, v14, {v(are)}')
    A(f'v_mul_f32 {v(zi2)}, v14, {v(aim)}')
    A(f'v_mul_f32 {v(zr2)}, {f32(LOG2E)}, {v(zr2)}')
    A(f'v_mul_f32 {v(zi2)}, {f32(INV2PI)}, {v(zi2)}')
    A('v_lshlrev_b32 v4, 2, v1')
    lU = A.newlabel('K1C_U'); lJ = A.newlabel('K1C_join')
    A('s_cmp_ge_u32 s4, 2')
    A(f's_cbranch_scc1 {lU}')
    wr, wi = 20, 21
    cexp(A, wr, wi, zr2, zi2, 8.0, 30)
    vr, vi, nr, ni = 22, 23, 24, 25
    A(f'v_mov_b32 {v(vr)}, 1.0'); A(f'v_mov_b32 {v(vi)}, 0')
    cur = (22, 23); nxt = (24, 25)
    for j in range(32):
        pk = 26 + (j & 1)
        A(f'v_cvt_pk_bf16_f32 {v(pk)}, {v(cur[0])}, {v(cur[1])}')
        A(f'ds_write_b32 v4, {v(pk)} offset:{K1_LDS_VB + j*UP}')
        if j < 31:
            cmul(A, nxt[0], nxt[1], cur[0], cur[1], wr, wi)
            cur, nxt = nxt, cur
    A(f's_branch {lJ}')
    A.label(lU)
    A(f'v_mul_f32 {v(bre)}, v14, {v(bre)}'); A(f'v_mul_f32 {v(bim)}, v14, {v(bim)}')
    cb = (18, 19)
    cmul(A, cb[0], cb[1], cre, cim, bre, bim)
    e1 = (20, 21); e256 = (22, 23); e2 = (24, 25); e4 = (26, 27)
    cexp(A, e1[0], e1[1], zr2, zi2, 1.0, 30)
    cexp(A, e256[0], e256[1], zr2, zi2, 256.0, 32)
    cmul(A, e2[0], e2[1], e1[0], e1[1], e1[0], e1[1])
    cmul(A, e4[0], e4[1], e2[0], e2[1], e2[0], e2[1])
    pkc = [0]
    def emit(row, u):
        pk = 40 + (pkc[0] & 1); pkc[0] += 1
        A(f'v_cvt_pk_bf16_f32 {v(pk)}, {v(u[0])}, -{v(u[1])}')
        A(f'ds_write_b32 v4, {v(pk)} offset:{row*UP}')
    ua = (34, 35); ub = (36, 37); uc = (38, 39)
    emit(0, cb)
    cur = cb; pool = [ua, ub]
    for i in range(1, 8):
        n = pool[i & 1]
        cmul(A, n[0], n[1], cur[0], cur[1], e1[0], e1[1]); emit(i, n); cur = n
    cmul(A, uc[0], uc[1], cb[0], cb[1], e256[0], e256[1]); emit(8, uc)
    cur = uc
    for i in range(9, 12):
        n = pool[i & 1]
        cmul(A, n[0], n[1], cur[0], cur[1], e2[0], e2[1]); emit(i, n); cur = n
    big = [(42, 43), (44, 45)]
    cur = uc
    for idx, row in enumerate((12, 14, 16, 17, 18, 19, 20)):
        n = big[idx & 1]
        cmul(A, n[0], n[1], cur[0], cur[1], e256[0], e256[1]); emit(row, n); cur = n
        if row in (12, 14):
            cmul(A, ua[0], ua[1], cur[0], cur[1], e4[0], e4[1]); emit(row + 1, ua)
    A.label(lJ)
    A('v_mov_b32 v5, 0')
    A(f'v_mov_b32 v6, {K1_LDS_KL}')
    A(f'ds_write_b32 v6, v5 offset:12')
    A('s_waitcnt lgkmcnt(0)')
    A('s_barrier')
    A('v_and_b32 v1, 63, v0')
    A('v_and_b32 v2, 15, v1')
    A('v_lshrrev_b32 v3, 4, v1')
    A('s_lshr_b32 s28, s4, 1'); A('s_and_b32 s29, s4, 1')
    A(f's_mul_i32 s30, s28, {16*UP}'); A(f's_mul_i32 s31, s29, {16*UP}'); A(f's_add_u32 s31, s31, {K1_LDS_VB}')
    A(f'v_mul_u32_u24 v4, {UP}, v2'); A('v_lshl_add_u32 v4, v3, 4, v4')
    A('v_add_u32 v5, s30, v4'); A('v_add_u32 v6, s31, v4')
    for ks in range(8):
        A(f'ds_read_b128 {v(16+8*ks,4)}, v5 offset:{ks*64}')
        A(f'ds_read_b128 {v(20+8*ks,4)}, v6 offset:{ks*64}')
    for ks in range(8):
        A(f's_waitcnt lgkmcnt({min(15, 14-2*ks)})')
        A(f'v_mfma_f32_16x16x32_bf16 v[8:11], {v(16+8*ks,4)}, {v(20+8*ks,4)}, {"0" if ks == 0 else "v[8:11]"}')
    A('s_lshl_b32 s30, s29, 4'); A('v_add_u32 v7, s30, v2'); A('v_lshlrev_b32 v7, 3, v7')
    lr1 = A.newlabel('K1C_rt1'); lsc = A.newlabel('K1C_sc')
    A('s_cmp_eq_u32 s28, 1')
    A(f's_cbranch_scc1 {lr1}')
    A('v_max_u32 v12, 1, v3')
    A('v_add_u32 v12, -1, v12')
    A('v_mov_b32 v13, 1')
    A('v_lshlrev_b32 v12, v12, v13')
    A('v_lshlrev_b32 v13, 7, v12')
    A('v_lshlrev_b32 v14, 2, v3')
    A('v_cmp_gt_u32 vcc, 2, v3')
    A('v_cndmask_b32 v13, v13, v14, vcc')
    A('v_mov_b32 v14, 0'); A('v_mov_b32 v15, 248')
    A('v_cmp_eq_u32 vcc, 3, v3')
    A('v_cndmask_b32 v14, v14, v15, vcc')
    A('v_add_u32 v13, v13, v7')
    A('v_add_u32 v76, v13, v12')
    A('v_add_u32 v77, v76, v12'); A('v_add_u32 v78, v77, v12')
    A('v_add_u32 v77, v77, v14'); A('v_add_u32 v78, v78, v14')
    A('v_mov_b32 v75, v13')
    A(f's_branch {lsc}')
    A.label(lr1)
    A('v_add_u32 v75, 1024, v7'); A('v_add_u32 v76, 1280, v7'); A('v_add_u32 v77, 1536, v7'); A('v_add_u32 v78, 1792, v7')
    A('v_mov_b32 v12, 2056')
    A('v_cmp_lt_u32 vcc, 0, v3')
    for r in (75, 76, 77, 78):
        A(f'v_cndmask_b32 {v(r)}, {v(r)}, v12, vcc')
    A('v_lshl_or_b32 v13, v3, 12, v7')
    A('v_mov_b32 v14, 2048')
    A('v_cmp_eq_u32 vcc, 0x1000, v13')
    A('v_cndmask_b32 v75, v75, v14, vcc')
    A.label(lsc)
    A.pad(8)
    A('v_cvt_pk_bf16_f32 v12, v8, v9'); A('v_cvt_pk_bf16_f32 v13, v10, v11')
    for r in (75, 76, 77, 78):
        A(f'v_lshlrev_b32 {v(r)}, 1, {v(r)}')
    KLB = K1_LDS_KL + 16
    A(f'ds_write_b16 v75, v12 offset:{KLB}')
    A(f'ds_write_b16_d16_hi v76, v12 offset:{KLB}')
    A(f'ds_write_b16 v77, v13 offset:{KLB}')
    A(f'ds_write_b16_d16_hi v78, v13 offset:{KLB}')
    A('s_waitcnt lgkmcnt(0)')
    A('s_barrier')
    A('v_lshlrev_b32 v1, 4, v0')
    A('v_sub_u32 v2, 4094, v1')
    A('v_cvt_f32_i32 v2, v2')
    for e in range(0, 10, 2):
        A(f'v_add_f32 v16, {f32(-2.0*e)}, v2')
        A(f'v_add_f32 v17, {f32(-2.0*(e+1))}, v2')
        A('v_cvt_pk_bf16_f32 v18, v16, v17')
        unpack_lo(A, 16, 18); unpack_hi(A, 17, 18)
        A(f'v_cvt_i32_f32 {v(20+e)}, v16')
        A(f'v_cvt_i32_f32 {v(21+e)}, v17')
    for e in range(9):
        A(f'ds_read_u16 {v(48+e)}, {v(20+e)} offset:{KLB}')
    A('s_waitcnt lgkmcnt(0)')
    for k in range(4):
        A(f'v_lshl_or_b32 {v(32+k)}, {v(49+2*k)}, 16, {v(48+2*k)}')
        A(f'v_lshl_or_b32 {v(40+k)}, {v(50+2*k)}, 16, {v(49+2*k)}')
    A(f's_mul_i32 s30, s3, {2*RG_PITCH}')
    A(f's_add_u32 s31, s30, {RG_PITCH}')
    A('buffer_store_dwordx4 v[32:35], v1, s[24:27], s30 offen')
    A('buffer_store_dwordx4 v[40:43], v1, s[24:27], s31 offen')
    A('v_cmp_gt_u32 vcc, 8, v0')
    A('s_and_saveexec_b64 s[32:33], vcc')
    lz = A.newlabel('K1C_z')
    A(f's_cbranch_execz {lz}')
    A('v_and_b32 v2, 3, v0'); A('v_lshlrev_b32 v2, 4, v2'); A('v_add_u32 v2, 4096, v2')
    A('v_lshrrev_b32 v3, 2, v0'); A(f'v_mul_u32_u24 v3, {RG_PITCH}, v3'); A('v_add_u32 v2, v2, v3')
    for k in range(4): A(f'v_mov_b32 {v(44+k)}, 0')
    A('buffer_store_dwordx4 v[44:47], v2, s[24:27], s30 offen')
    A.label(lz)
    A('s_endpgm')

def kappa_tiles(kap):
    if kap < 24:
        j, p = divmod(kap, 3)
        return 7*j + 2*p, 7*j + 2*p + 1
    i = kap - 24
    return 7*(2*i) + 6, 7*(2*i+1) + 6

def k1_roleD(A):
    load_ptr(A, 4, 'wout'); load_ptr(A, 6, 'ws')
    A(f's_sub_u32 s3, s2, {K1_D0}')
    wave_id(A, 8, 1)
    l2 = A.newlabel('K1D_hi'); l3 = A.newlabel('K1D_go')
    A('s_cmp_ge_u32 s3, 24')
    A(f's_cbranch_scc1 {l2}')
    A('s_mul_i32 s9, s3, 0x5556'); A('s_lshr_b32 s9, s9, 16')
    A('s_mul_i32 s10, s9, 3'); A('s_sub_u32 s10, s3, s10')
    A('s_mul_i32 s9, s9, 7'); A('s_lshl_b32 s10, s10, 1'); A('s_add_u32 s9, s9, s10')
    A('s_add_u32 s10, s9, 1')
    A(f's_branch {l3}')
    A.label(l2)
    A('s_sub_u32 s9, s3, 24'); A('s_mul_i32 s9, s9, 14'); A('s_add_u32 s9, s9, 6'); A('s_add_u32 s10, s9, 7')
    A.label(l3)
    A('s_waitcnt lgkmcnt(0)')
    srd(A, 12, 4, 0, 896*1024)
    srd(A, 16, 6, WS_WO, 896*1024)
    A('v_and_b32 v1, 63, v0'); A('v_lshlrev_b32 v2, 4, v1')
    A('s_cmp_ge_u32 s8, 2')
    A('s_cselect_b32 s11, s10, s9')
    A('s_lshl_b32 s11, s11, 4')
    A('s_and_b32 s20, s8, 1'); A('s_lshl_b32 s20, s20, 3'); A('s_add_u32 s11, s11, s20')
    A('s_lshl_b32 s11, s11, 10')
    P = 1040
    for i in range(8):
        A(f's_add_u32 s20, s11, {i*1024}')
        A(f'buffer_load_dwordx4 {v(8+4*i,4)}, v2, s[12:15], s20 offen')
    A(f's_mul_i32 s21, s8, {8*P}')
    A('v_add_u32 v3, s21, v2')
    for i in range(8):
        A(f's_waitcnt vmcnt({7-i})')
        A(f'ds_write_b128 v3, {v(8+4*i,4)} offset:{i*P}')
    A('s_waitcnt lgkmcnt(0)')
    A('s_barrier')
    A('v_lshrrev_b32 v4, 4, v1'); A('v_lshlrev_b32 v4, 3, v4')
    A('v_bfe_u32 v5, v1, 2, 2'); A('v_add_u32 v4, v4, v5'); A(f'v_mul_u32_u24 v4, {P}, v4')
    A('v_and_b32 v5, 3, v1'); A('v_lshl_add_u32 v4, v5, 3, v4')
    A('s_lshl_b32 s21, s8, 8'); A('v_add_u32 v4, s21, v4')
    for i in range(8):
        A(f'ds_read_b64_tr_b16 {v(8+4*i,2)}, v4 offset:{i*32}')
        A(f'ds_read_b64_tr_b16 {v(10+4*i,2)}, v4 offset:{i*32 + 4*P}')
    A(f's_mul_i32 s21, s8, {8*28*1024}'); A('s_lshl_b32 s22, s3, 10'); A('s_add_u32 s21, s21, s22')
    for i in range(8):
        A(f's_waitcnt lgkmcnt({14-2*i})')
        A(f's_add_u32 s22, s21, {i*28*1024}')
        A(f'buffer_store_dwordx4 {v(8+4*i,4)}, v2, s[16:19], s22 offen')
    A('s_endpgm')

def k1_roleE(A):
    load_ptr(A, 6, 'ws')
    A('v_lshlrev_b32 v1, 4, v0')
    for k in range(4): A(f'v_mov_b32 {v(4+k)}, 0')
    A('s_waitcnt lgkmcnt(0)')
    srd(A, 12, 6, WS_STAT2, 2048*8)
    for i in range(4):
        A(f's_mov_b32 s8, {i*4096}')
        A('buffer_store_dwordx4 v[4:7], v1, s[12:15], s8 offen')
    A('s_endpgm')

def gen_k1():
    A = Asm()
    A(f's_cmp_lt_u32 s2, {K1_C0}');  A('s_cbranch_scc1 K1_A')
    A(f's_cmp_lt_u32 s2, {K1_B0}');  A('s_cbranch_scc1 K1_C')
    A(f's_cmp_lt_u32 s2, {K1_D0}');  A('s_cbranch_scc1 K1_B')
    A(f's_cmp_lt_u32 s2, {K1_E0}');  A('s_cbranch_scc1 K1_D')
    A(f's_cmp_lt_u32 s2, {K1_GRID}'); A('s_cbranch_scc1 K1_E')
    A('s_endpgm')
    for nm, fn in (('K1_A', k1_roleA), ('K1_C', k1_roleC), ('K1_B', k1_roleB), ('K1_D', k1_roleD), ('K1_E', k1_roleE)):
        A.label(nm); A.hist = []
        fn(A)
    lds = max(K1_LDS, 32*1040, 2048)
    return dict(name='k1_prep_kernel', grid=K1_GRID, block=256, lds=lds, body=A.text(), vgpr=96, sgpr=40)


K2_KC, K2_H, K2_X, K2_CH = 0, 16640, 21760, 26112
K2_NCONV, K2_NW = 256, 112

def reduce16(A, S):
    for i in range(8): A(f'v_permlane32_swap_b32 {v(S+i)}, {v(S+8+i)}')
    for i in range(8): A(f'v_add_f32 {v(S+i)}, {v(S+i)}, {v(S+8+i)}')
    for i in range(4): A(f'v_permlane16_swap_b32 {v(S+i)}, {v(S+4+i)}')
    for i in range(4): A(f'v_add_f32 {v(S+i)}, {v(S+i)}, {v(S+4+i)}')
    for sh in (8, 4, 2, 1):
        for i in range(4):
            A(f'v_add_f32_dpp {v(S+i)}, {v(S+i)}, {v(S+i)} row_ror:{sh} row_mask:0xf bank_mask:0xf')

def k2_conv(A):
    load_ptr(A, 4, 'ws'); load_ptr(A, 6, 'dskip')
    wave_id(A, 8, 1)
    A('s_lshr_b32 s9, s8, 2')
    A('s_and_b32 s10, s8, 3')
    A('s_and_b32 s11, s2, 7'); A('s_lshr_b32 s12, s2, 3'); A('s_lshl_b32 s12, s12, 4'); A('s_add_u32 s11, s11, s12')
    A('s_lshl_b32 s12, s9, 3'); A('s_add_u32 s11, s11, s12')
    A(f's_mul_i32 s13, s9, {K2_CH}')
    A('v_and_b32 v1, 63, v0')
    A('v_and_b32 v2, 255, v0')
    A('v_lshlrev_b32 v3, 4, v1')
    A('s_waitcnt lgkmcnt(0)')
    A('s_lshl_b32 s14, s11, 2')
    A('s_add_u32 s16, s4, s14'); A('s_addc_u32 s17, s5, 0')
    A('s_load_dword s40, s[16:17], 0x0')
    A('s_load_dword s41, s[16:17], 0x800')
    A('s_load_dword s42, s[16:17], 0x1000')
    A('s_lshl_b32 s14, s11, 1'); A('s_and_b32 s15, s14, 0xfffffffc')
    A('s_add_u32 s16, s6, s15'); A('s_addc_u32 s17, s7, 0')
    A('s_load_dword s43, s[16:17], 0x0')
    srd(A, 20, 4, WS_RG, 512*2*RG_PITCH)
    srd(A, 24, 4, WS_XB, 2048*1024)
    srd(A, 28, 4, WS_STAT1, 2048*8)
    srd(A, 32, 4, WS_X1T, 2048*1024)
    A(f's_mul_i32 s14, s11, {2*RG_PITCH}')
    A('s_and_b32 s15, s10, 1'); A(f's_mul_i32 s15, s15, {RG_PITCH}'); A('s_add_u32 s14, s14, s15')
    A('s_lshr_b32 s15, s10, 1'); A('s_lshl_b32 s15, s15, 2'); A('s_add_u32 s14, s14, s15')
    A(f's_mul_i32 s15, s10, {RG_PITCH}'); A('s_add_u32 s15, s15, s13')
    for i in range(4):
        A(f's_add_u32 m0, s15, {i*1024}')
        A(f's_add_u32 s18, s14, {i*1024}')
        A('buffer_load_dwordx4 v3, s[20:23], s18 offen lds')
    A('s_and_b32 s14, s11, 7'); A('s_lshl_b32 s14, s14, 10'); A('s_lshr_b32 s15, s11, 3'); A('s_lshl_b32 s15, s15, 4')
    A('s_add_u32 s14, s14, s15')
    A('v_lshlrev_b32 v4, 13, v2')
    A('buffer_load_dwordx4 v[8:11], v4, s[24:27], s14 offen')
    A('v_lshlrev_b32 v5, 6, v2')
    for i in range(4):
        A(f'buffer_load_dwordx4 {v(12+4*i,4)}, v5, s[28:31], 0 offen offset:{16*i}')
    for k in range(4): A(f'v_mov_b32 {v(28+k)}, 0')
    A(f's_mul_i32 s15, s10, {RG_PITCH}'); A('s_add_u32 s15, s15, s13'); A('s_add_u32 s15, s15, 4096')
    A('v_add_u32 v6, s15, v3')
    A('s_mov_b64 exec, 0xf')
    A('ds_write_b128 v6, v[28:31]')
    A('s_mov_b64 exec, -1')
    lz = A.newlabel('K2_nz')
    A('s_cmp_lg_u32 s10, 0'); A(f's_cbranch_scc1 {lz}')
    A(f's_add_u32 s15, s13, {K2_H}')
    A('v_add_u32 v6, s15, v3')
    A('ds_write_b128 v6, v[28:31]')
    A.label(lz)
    A('v_bfe_u32 v6, v2, 4, 1'); A('v_lshlrev_b32 v6, 1, v6'); A('v_and_b32 v7, 3, v2'); A('v_xor_b32 v6, v6, v7')
    A('v_lshlrev_b32 v6, 4, v6'); A('v_lshrrev_b32 v7, 2, v2'); A('v_lshl_add_u32 v6, v7, 6, v6')
    A('v_add_u32 v6, s13, v6')
    A('s_waitcnt lgkmcnt(0)')
    A('v_mov_b32 v32, s40')
    A('v_mov_b32 v33, s41'); A('v_add_f32 v33, 1.0, v33')
    A('v_readfirstlane_b32 s44, v33')
    A('s_and_b32 s14, s11, 1'); A('s_lshl_b32 s14, s14, 4'); A('s_lshr_b32 s45, s43, s14'); A('s_lshl_b32 s45, s45, 16')
    A('s_waitcnt vmcnt(4)')
    A(f'ds_write_b128 v6, v[8:11] offset:{K2_X}')
    for j in range(4):
        unpack_lo(A, 36+2*j, 8+j); unpack_hi(A, 37+2*j, 8+j)
    A('s_waitcnt vmcnt(0)')
    for e in range(8):
        A(f'v_fma_f32 {v(36+e)}, {v(36+e)}, {v(12+2*e)}, -{v(13+2*e)}')
    for e in range(8):
        A(f'v_fma_f32 {v(36+e)}, {v(36+e)}, s44, v32')
    for j in range(4):
        A(f'v_cvt_pk_bf16_f32 {v(44+j)}, {v(36+2*j)}, {v(37+2*j)}')
    A(f'ds_write_b128 v6, v[44:47] offset:{K2_H + 1024}')
    A('v_and_b32 v8, 15, v1')
    A('v_lshrrev_b32 v9, 4, v1')
    A('s_and_b32 s14, s10, 1')
    A('s_lshr_b32 s15, s10, 1')
    A('v_and_b32 v10, 3, v8'); A('v_sub_u32 v10, 3, v10'); A(f'v_mul_u32_u24 v10, {RG_PITCH}, v10')
    A('v_lshrrev_b32 v11, 2, v8'); A('v_lshlrev_b32 v11, 3, v11'); A('v_sub_u32 v10, v10, v11')
    A('v_lshl_add_u32 v10, v9, 4, v10')
    A('s_lshl_b32 s16, s14, 5'); A('s_lshl_b32 s17, s15, 9'); A('s_add_u32 s16, s16, s17')
    A(f's_sub_u32 s16, s13, s16'); A(f's_add_u32 s16, s16, {4088 - 3072 - 448}')
    A('v_add_u32 v10, s16, v10')
    VB = 96
    A('s_lshl_b32 s17, s15, 3'); A('s_sub_u32 s17, 16, s17')
    A(f's_add_u32 s18, s13, {K2_H}')
    for rp in range(8):
        A(f'v_add_u32 v11, s17, v8')
        if rp: A(f'v_add_u32 v11, {-rp}, v11')
        A('v_bfe_u32 v12, v11, 2, 1'); A('v_lshlrev_b32 v12, 1, v12'); A('v_xor_b32 v12, v12, v9')
        A('v_lshlrev_b32 v12, 4, v12'); A('v_lshl_add_u32 v12, v11, 6, v12')
        A(f'v_add_u32 {v(VB+rp)}, s18, v12')
    A('s_waitcnt vmcnt(0) lgkmcnt(0)')
    A('s_barrier')
    ACC = 16
    FR = [32, 64]
    def reads(rp):
        base = FR[rp & 1]
        for q in range(4):
            for p_ in range(2):
                A(f'ds_read_b64 {v(base+4*q+2*p_,2)}, v10 offset:{(3-q)*1024 + (7-rp)*64 + 8*p_}')
        for m_ in range(4):
            A(f'ds_read_b128 {v(base+16+4*m_,4)}, {v(VB+rp)} offset:{m_*1024}')
    reads(0)
    first = [True]*4
    for rp in range(8):
        if rp < 7:
            reads(rp+1); A('s_waitcnt lgkmcnt(12)')
        else:
            A('s_waitcnt lgkmcnt(0)')
        base = FR[rp & 1]
        for al in range(4):
            for q in range(al+1):
                m_ = al - q
                c = '0' if first[al] else v(ACC+4*al,4)
                first[al] = False
                A(f'v_mfma_f32_16x16x32_bf16 {v(ACC+4*al,4)}, {v(base+4*q,4)}, {v(base+16+4*m_,4)}, {c}')
    A('s_barrier')
    A('s_lshl_b32 s16, s14, 1'); A('s_sub_u32 s17, 1, s15'); A('s_add_u32 s16, s16, s17'); A('s_lshl_b32 s16, s16, 11'); A('s_add_u32 s16, s16, s13')
    A('v_add_u32 v11, s16, v3')
    A('s_lshl_b32 s16, s14, 1'); A('s_add_u32 s16, s16, s15'); A('s_lshl_b32 s16, s16, 11'); A('s_add_u32 s16, s16, s13')
    A('v_add_u32 v12, s16, v3')
    l1 = A.newlabel('K2_rh1'); l2 = A.newlabel('K2_ex')
    A('s_cmp_eq_u32 s15, 1'); A(f's_cbranch_scc1 {l1}')
    A.pad(8)
    A(f'ds_write_b128 v11, {v(ACC+8,4)}'); A(f'ds_write_b128 v11, {v(ACC+12,4)} offset:1024')
    A(f's_branch {l2}')
    A.label(l1)
    A.pad(8)
    A(f'ds_write_b128 v11, {v(ACC,4)}'); A(f'ds_write_b128 v11, {v(ACC+4,4)} offset:1024')
    for k in range(8): A(f'v_mov_b32 {v(ACC+k)}, {v(ACC+8+k)}')
    A.label(l2)
    A('s_waitcnt lgkmcnt(0)')
    A('s_barrier')
    A('ds_read_b128 v[72:75], v12'); A('ds_read_b128 v[76:79], v12 offset:1024')
    A('v_bfe_u32 v13, v8, 2, 1'); A('v_lshlrev_b32 v13, 1, v13')
    A('v_lshrrev_b32 v14, 1, v9'); A('s_lshl_b32 s16, s14, 1'); A('v_add_u32 v14, s16, v14'); A('v_xor_b32 v13, v13, v14')
    A('v_lshlrev_b32 v13, 4, v13'); A('v_lshl_add_u32 v13, v8, 6, v13')
    A('v_and_b32 v14, 1, v9'); A('v_lshl_add_u32 v13, v14, 3, v13')
    A('s_lshl_b32 s16, s15, 11'); A('s_add_u32 s16, s16, s13')
    A('v_add_u32 v13, s16, v13')
    for i in range(2):
        A(f'ds_read_b64 {v(80+2*i,2)}, v13 offset:{K2_H + 1024 + i*1024}')
        A(f'ds_read_b64 {v(84+2*i,2)}, v13 offset:{K2_X + i*1024}')
    A('v_lshlrev_b32 v14, 6, v8'); A('v_lshl_add_u32 v14, v9, 3, v14'); A('s_lshl_b32 s16, s14, 5'); A('v_add_u32 v14, s16, v14')
    A('s_lshl_b32 s16, s11, 12'); A('s_lshl_b32 s17, s15, 11'); A('s_add_u32 s16, s16, s17')
    A('v_mov_b32 v15, s42')
    A('s_waitcnt lgkmcnt(0)')
    for i in range(2):
        y = ACC + 4*i
        for k in range(4): A(f'v_add_f32 {v(y+k)}, {v(y+k)}, {v(72+4*i+k)}')
        for k in range(2):
            unpack_lo(A, 88+2*k, 80+2*i+k); unpack_hi(A, 89+2*k, 80+2*i+k)
            unpack_lo(A, 92+2*k, 84+2*i+k); unpack_hi(A, 93+2*k, 84+2*i+k)
        for k in range(4): A(f'v_fma_f32 {v(y+k)}, {v(88+k)}, s45, {v(y+k)}')
        for k in range(4): A(f'v_fma_f32 {v(y+k)}, {v(y+k)}, v15, {v(92+k)}')
        A(f'v_cvt_pk_bf16_f32 {v(96+2*i)}, {v(y)}, {v(y+1)}'); A(f'v_cvt_pk_bf16_f32 {v(97+2*i)}, {v(y+2)}, {v(y+3)}')
        A(f'buffer_store_dwordx2 {v(96+2*i,2)}, v14, s[32:35], s16 offen offset:{i*1024}')
    A('s_endpgm')

def k2_wprime(A):
    load_ptr(A, 4, 'ws'); load_ptr(A, 6, 'win')
    A(f's_sub_u32 s3, s2, {K2_NCONV}')
    wave_id(A, 8, 1)
    A('v_and_b32 v1, 63, v0')
    A('s_mov_b32 s9, 3584'); A('v_mul_lo_u32 v2, v0, s9')
    A('s_lshl_b32 s9, s3, 5')
    A('v_lshlrev_b32 v3, 2, v0')
    A('s_waitcnt lgkmcnt(0)')
    srd(A, 12, 6, 0, 512*3584)
    srd(A, 16, 4, WS_MOD, 3072*4)
    srd(A, 20, 4, WS_WP, 1792*1024)
    srd(A, 24, 4, WS_U, 1792*4)
    srd(A, 28, 4, WS_V, 1792*4)
    A('buffer_load_dwordx4 v[8:11], v2, s[12:15], s9 offen')
    A('buffer_load_dwordx4 v[12:15], v2, s[12:15], s9 offen offset:16')
    A('s_mov_b32 s10, 8192'); A('s_mov_b32 s11, 6144')
    A('buffer_load_dword v4, v3, s[16:19], s10 offen')
    A('buffer_load_dword v5, v3, s[16:19], s11 offen')
    A('s_waitcnt vmcnt(0)')
    A('v_add_f32 v4, 1.0, v4')
    W = 16; U = 32; Vv = 48
    for j in range(8):
        unpack_lo(A, W+2*j, 8+j); unpack_hi(A, W+2*j+1, 8+j)
    for e in range(16): A(f'v_mul_f32 {v(Vv+e)}, {v(W+e)}, v5')
    for e in range(16): A(f'v_mul_f32 {v(W+e)}, {v(W+e)}, v4')
    for j in range(8): A(f'v_cvt_pk_bf16_f32 {v(8+j)}, {v(W+2*j)}, {v(W+2*j+1)}')
    for j in range(8):
        unpack_lo(A, U+2*j, 8+j); unpack_hi(A, U+2*j+1, 8+j)
    A('v_lshlrev_b32 v6, 5, v0')
    A('ds_write_b128 v6, v[8:11]'); A('ds_write_b128 v6, v[12:15] offset:16')
    reduce16(A, U); reduce16(A, Vv)
    A('v_lshrrev_b32 v7, 4, v1'); A('v_lshlrev_b32 v7, 4, v7'); A('s_lshl_b32 s9, s8, 7'); A('v_add_u32 v7, s9, v7')
    A('s_mov_b32 exec_lo, 0x10001'); A('s_mov_b32 exec_hi, 0x10001')
    A(f'ds_write_b128 v7, {v(U,4)} offset:16384'); A(f'ds_write_b128 v7, {v(Vv,4)} offset:{16384+64}')
    A('s_mov_b64 exec, -1')
    A('s_waitcnt lgkmcnt(0)')
    A('s_barrier')
    A('v_lshrrev_b32 v4, 4, v1'); A('v_lshlrev_b32 v4, 2, v4'); A('v_bfe_u32 v5, v1, 2, 2'); A('v_add_u32 v4, v4, v5')
    A('v_lshlrev_b32 v4, 5, v4'); A('v_and_b32 v5, 3, v1'); A('v_lshl_add_u32 v4, v5, 3, v4')
    A('s_lshl_b32 s9, s8, 11'); A('v_add_u32 v4, s9, v4')
    for i in range(2):
        A(f'ds_read_b64_tr_b16 {v(16+4*i,2)}, v4 offset:{i*1024}')
        A(f'ds_read_b64_tr_b16 {v(18+4*i,2)}, v4 offset:{i*1024 + 512}')
    A('v_lshlrev_b32 v5, 4, v1')
    A('s_lshl_b32 s9, s3, 14'); A('s_lshl_b32 s10, s8, 11'); A('s_add_u32 s9, s9, s10')
    A('s_waitcnt lgkmcnt(0)')
    for i in range(2):
        A(f'buffer_store_dwordx4 {v(16+4*i,4)}, v5, s[20:23], s9 offen offset:{i*1024}')
    A('v_cmp_gt_u32 vcc, 32, v0')
    A('s_and_saveexec_b64 s[32:33], vcc')
    lab = A.newlabel('K2W_done')
    A(f's_cbranch_execz {lab}')
    A('v_lshlrev_b32 v6, 2, v0')
    for w in range(8): A(f'ds_read_b32 {v(24+w)}, v6 offset:{16384 + w*128}')
    A('s_waitcnt lgkmcnt(0)')
    for w in range(1, 8): A(f'v_add_f32 v24, v24, {v(24+w)}')
    A('s_lshl_b32 s9, s3, 6')
    A('v_and_b32 v7, 15, v0'); A('v_lshlrev_b32 v7, 2, v7')
    A('s_mov_b32 exec_lo, 0xffff'); A('s_mov_b32 exec_hi, 0')
    A('buffer_store_dword v24, v7, s[24:27], s9 offen')
    A('s_mov_b32 exec_lo, 0xffff0000')
    A('buffer_store_dword v24, v7, s[28:31], s9 offen')
    A.label(lab)
    A('s_endpgm')

def gen_k2():
    A = Asm()
    A(f's_cmp_lt_u32 s2, {K2_NCONV}');  A('s_cbranch_scc1 K2_C')
    A(f's_cmp_lt_u32 s2, {K2_NCONV + K2_NW}');  A('s_cbranch_scc1 K2_W')
    A('s_endpgm')
    for nm, fn in (('K2_C', k2_conv), ('K2_W', k2_wprime)):
        A.label(nm); A.hist = []
        fn(A)
    return dict(name='k2_conv_kernel', grid=K2_NCONV + K2_NW, block=512, lds=2*K2_CH, body=A.text(), vgpr=104, sgpr=48)


K3_SLOT = 30720
K3_NSLOT = 5
GC1 = -2.0 * 0.7978845608028654 * LOG2E
GC2 = GC1 * 0.044715

def gelu(A, x, t0, t1, vc2):
    A(f'v_mul_f32 {v(t0)}, {v(x)}, {v(x)}')
    A(f'v_fmaak_f32 {v(t0)}, {v(vc2)}, {v(t0)}, {f32(GC1)}')
    A(f'v_mul_f32 {v(t0)}, {v(x)}, {v(t0)}')
    A(f'v_exp_f32 {v(t0)}, {v(t0)}')
    A(f'v_add_f32 {v(t0)}, 1.0, {v(t0)}')
    A(f'v_rcp_f32 {v(t0)}, {v(t0)}')
    A(f'v_mul_f32 {v(x)}, {v(x)}, {v(t0)}')

def gelu_multi(A, xs, ts, vc2):
    for x, t in zip(xs, ts): A(f'v_mul_f32 {v(t)}, {v(x)}, {v(x)}')
    for x, t in zip(xs, ts): A(f'v_fmaak_f32 {v(t)}, {v(vc2)}, {v(t)}, {f32(GC1)}')
    for x, t in zip(xs, ts): A(f'v_mul_f32 {v(t)}, {v(x)}, {v(t)}')
    for x, t in zip(xs, ts): A(f'v_exp_f32 {v(t)}, {v(t)}')
    for x, t in zip(xs, ts): A(f'v_add_f32 {v(t)}, 1.0, {v(t)}')
    for x, t in zip(xs, ts): A(f'v_rcp_f32 {v(t)}, {v(t)}')
    for x, t in zip(xs, ts): A(f'v_mul_f32 {v(x)}, {v(x)}, {v(t)}')

def tile_map_256(A, s_mq, s_fh, s_idx):
    A(f's_and_b32 {s(s_mq)}, s2, 3'); A(f's_bfe_u32 {s(s_fh)}, s2, 0x10002'); A(f's_lshr_b32 {s(s_idx)}, s2, 3')

def gen_k3():
    A = Asm()
    A('s_cmp_lt_u32 s2, 256'); A('s_cbranch_scc1 K3_go'); A('s_endpgm'); A.label('K3_go')
    load_ptr(A, 4, 'ws')
    wave_id(A, 8, 1)
    tile_map_256(A, 9, 10, 11)
    A('s_and_b32 s12, s11, 3'); A('s_lshl_b32 s9, s9, 2'); A('s_add_u32 s12, s12, s9')
    A('s_lshr_b32 s13, s11, 2')
    A('s_lshr_b32 s14, s13, 2')
    A('s_and_b32 s13, s13, 3'); A('s_lshl_b32 s10, s10, 2'); A('s_add_u32 s13, s13, s10')
    A('s_mul_i32 s15, s14, 56'); A('s_mul_i32 s16, s13, 7'); A('s_add_u32 s15, s15, s16')
    A('s_and_b32 s17, s8, 3')
    A('s_lshr_b32 s18, s8, 2')
    A('v_and_b32 v1, 63, v0')
    A('v_lshlrev_b32 v2, 4, v1')
    A('v_lshrrev_b32 v3, 4, v1')
    A('v_and_b32 v4, 15, v1')
    A('s_waitcnt lgkmcnt(0)')
    srd(A, 20, 4, WS_X1T, 2048*1024)
    srd(A, 24, 4, WS_WP, 1792*1024)
    srd(A, 28, 4, WS_U, 2*8192)
    UV = 112
    A('s_lshl_b32 s19, s18, 2'); A('s_add_u32 s19, s19, s15'); A('s_lshl_b32 s19, s19, 6')
    A('v_lshlrev_b32 v5, 4, v3')
    A('s_add_u32 s32, s19, 8192')
    for j in range(4):
        A(f'buffer_load_dwordx4 {v(UV+4*j,4)}, v5, s[28:31], s19 offen offset:{64*j}')
        A(f'buffer_load_dwordx4 {v(UV+16+4*j,4)}, v5, s[28:31], s32 offen offset:{64*j}')
    for j in range(2):
        A(f'v_lshlrev_b32 v6, 1, v3');
        if j: A('v_add_u32 v6, 8, v6')
        A('v_xor_b32 v6, v6, v4'); A('v_lshlrev_b32 v6, 4, v6')
        A(f'v_lshl_add_u32 {v(8+j)}, v3, 12, v6')
    A('s_lshl_b32 s33, s8, 15'); A('s_lshl_b32 s34, s12, 8'); A('s_add_u32 s33, s33, s34')
    A('s_min_u32 s34, s8, 6'); A('s_lshl_b32 s35, s34, 11')
    A('s_add_u32 s34, s34, s15'); A('s_lshl_b32 s34, s34, 14')
    A('s_lshl_b32 s36, s8, 11')
    A('s_add_u32 s35, s35, 16384')
    def dma(stage):
        slot = (stage % K3_NSLOT) * K3_SLOT
        for j in range(2):
            A(f's_add_u32 m0, s36, {slot + j*1024}')
            A(f's_add_u32 s37, s33, {stage*64*4096 + j*4*4096}')
            A(f'buffer_load_dwordx4 {v(8+j)}, s[20:23], s37 offen lds')
        for j in range(2):
            A(f's_add_u32 m0, s35, {slot + j*1024}')
            A(f's_add_u32 s37, s34, {stage*2048 + j*1024}')
            A(f'buffer_load_dwordx4 v2, s[24:27], s37 offen lds')
    for st in range(5): dma(st)
    A('v_bfe_u32 v6, v1, 2, 2'); A('v_lshl_add_u32 v6, v3, 2, v6')
    A('v_and_b32 v7, 7, v6'); A('v_lshlrev_b32 v7, 1, v7')
    A('v_bfe_u32 v10, v1, 1, 1')
    A('s_lshl_b32 s19, s17, 2')
    for i in range(2):
        A(f'v_add_u32 v11, s19, v10')
        if i: A('v_add_u32 v11, 2, v11')
        A('v_xor_b32 v11, v11, v7'); A('v_lshlrev_b32 v11, 4, v11'); A('v_lshl_add_u32 v11, v6, 8, v11')
        A('v_and_b32 v12, 1, v1'); A(f'v_lshl_add_u32 {v(14+i)}, v12, 3, v11')
    A('s_lshl_b32 s19, s18, 13'); A('s_add_u32 s19, s19, 16384'); A('v_add_u32 v16, s19, v2')
    A('v_mov_b32 v20, 0'); A('v_mov_b32 v21, 0')
    A('s_mov_b32 s40, 0x3f803f80')
    A(f'v_mov_b32 v22, {f32(GC2)}')
    ACC = 32
    FRS = [64, 64+48]
    FR = [64, 144]
    def reads(stage, ntile):
        slot = (stage % K3_NSLOT) * K3_SLOT
        base = FR[stage & 1]
        A(f'v_add_u32 v17, {slot}, v14'); A(f'v_add_u32 v18, {slot}, v15'); A(f'v_add_u32 v19, {slot}, v16')
        out = []
        for ks in range(2):
            b = base + 24*ks
            for i in range(2):
                for hf in range(2):
                    out.append(f'ds_read_b64_tr_b16 {v(b+4*i+2*hf,2)}, {v(17+i)} offset:{ks*8192 + hf*4096}')
            for j in range(ntile):
                out.append(f'ds_read_b128 {v(b+8+4*j,4)}, v19 offset:{(2*j+ks)*1024}')
        return out
    def body(ntile, tag):
        first = [[True]*4, [True]*4]
        A('s_waitcnt vmcnt(16)'); A('s_barrier')
        for r_ in reads(0, ntile): A(r_)
        for i in range(8):
            if i < 7:
                A(f's_waitcnt vmcnt({4*max(0, min(i+4,7)-(i+1))}) lgkmcnt(0)')
                A('s_barrier')
                if i + 5 <= 7: dma(i+5)
                rd = reads(i+1, ntile)
            else:
                A('s_waitcnt lgkmcnt(0)'); rd = []
            base = FR[i & 1]
            mf = []
            for ks in range(2):
                b = base + 24*ks
                for j in range(ntile):
                    for t in range(2):
                        c = '0' if first[t][j] else v(ACC+16*t+4*j,4)
                        first[t][j] = False
                        mf.append(f'v_mfma_f32_16x16x32_bf16 {v(ACC+16*t+4*j,4)}, {v(b+8+4*j,4)}, {v(b+4*t,4)}, {c}')
                for t in range(2):
                    for k in range(4):
                        o = 's40' if tag == 0 else v(b+4*t+k)
                        mf.append(f'v_dot2_f32_bf16 {v(20+t)}, {v(b+4*t+k)}, {o}, {v(20+t)}')
            n = max(len(mf), len(rd)); ri = 0
            for k, m_ in enumerate(mf):
                A(m_)
                if ri < len(rd): A(rd[ri]); ri += 1
            while ri < len(rd): A(rd[ri]); ri += 1
    lf1 = A.newlabel('K3_f1'); lep = A.newlabel('K3_ep')
    A('s_cmp_eq_u32 s18, 1'); A(f's_cbranch_scc1 {lf1}')
    body(4, 0)
    A(f's_branch {lep}')
    A.label(lf1); A.hist = []
    body(3, 1)
    A.label(lep); A.hist = []
    A.pad(8)
    A('v_permlane32_swap_b32 v20, v21')
    A('v_add_f32 v20, v20, v21'); A('v_mov_b32 v21, v20')
    A('v_permlane16_swap_b32 v20, v21')
    A('v_add_f32 v20, v20, v21')
    A('s_barrier')
    A('v_lshrrev_b32 v6, 5, v1'); A('v_lshl_add_u32 v6, v6, 4, v4'); A('s_lshl_b32 s19, s17, 5'); A('v_add_u32 v6, s19, v6')
    A('v_lshlrev_b32 v6, 2, v6'); A('s_lshl_b32 s19, s18, 9'); A('v_add_u32 v7, s19, v6')
    A('ds_write_b32 v7, v20')
    A('s_waitcnt lgkmcnt(0)'); A('s_barrier')
    A('s_lshl_b32 s19, s17, 5'); A('v_add_u32 v6, s19, v4'); A('v_lshlrev_b32 v6, 2, v6')
    for t in range(2):
        A(f'ds_read_b32 {v(24+t)}, v6 offset:{64*t}')
        A(f'ds_read_b32 {v(26+t)}, v6 offset:{512+64*t}')
    A(f's_mov_b32 s41, {f32(1.0/512)}'); A(f's_mov_b32 s42, {f32(1e-5)}')
    A('s_waitcnt lgkmcnt(0)')
    for t in range(2):
        m, q = 24+t, 26+t
        A(f'v_mul_f32 {v(m)}, s41, {v(m)}'); A(f'v_mul_f32 {v(q)}, s41, {v(q)}')
        A(f'v_fma_f32 {v(q)}, -{v(m)}, {v(m)}, {v(q)}'); A(f'v_max_f32 {v(q)}, 0, {v(q)}'); A(f'v_add_f32 {v(q)}, s42, {v(q)}')
        A(f'v_rsq_f32 {v(q)}, {v(q)}')
        A(f'v_mul_f32 {v(m)}, {v(m)}, {v(q)}'); A(f'v_sub_f32 {v(m)}, 0, {v(m)}')
    def epi(ntile, typ):
        for t in range(2):
            for j in range(ntile):
                a0 = ACC + 16*t + 4*j
                for k in range(4):
                    A(f'v_fma_f32 {v(64+k)}, {v(24+t)}, {v(UV+4*j+k)}, {v(UV+16+4*j+k)}')
                for k in range(4):
                    A(f'v_fma_f32 {v(a0+k)}, {v(26+t)}, {v(a0+k)}, {v(64+k)}')
                gelu_multi(A, [a0+k for k in range(4)], [68+k for k in range(4)], 22)
        PK = 72
        for t in range(2):
            for j in range(ntile):
                a0 = ACC + 16*t + 4*j; p0 = PK + (t*4+j)*2
                A(f'v_cvt_pk_bf16_f32 {v(p0)}, {v(a0)}, {v(a0+1)}'); A(f'v_cvt_pk_bf16_f32 {v(p0+1)}, {v(a0+2)}, {v(a0+3)}')
        if typ == 0:
            srd(A, 44, 4, WS_Z1, 128*8*3584)
            A('s_lshl_b32 s19, s12, 3'); A('s_lshl_b32 s32, s17, 1'); A('s_add_u32 s19, s19, s32')
            A('s_lshl_b32 s19, s19, 3'); A('s_add_u32 s19, s19, s13'); A('s_mul_i32 s19, s19, 3584')
            A('v_lshlrev_b32 v7, 3, v1')
            for t in range(2):
                A(f's_add_u32 s32, s19, {t*8*3584}')
                if ntile == 4:
                    A(f'buffer_store_dwordx4 {v(PK+t*8,4)}, v2, s[44:47], s32 offen')
                    A(f'buffer_store_dwordx4 {v(PK+t*8+4,4)}, v2, s[44:47], s32 offen offset:1024')
                else:
                    A(f'buffer_store_dwordx4 {v(PK+t*8,4)}, v2, s[44:47], s32 offen offset:2048')
                    A(f'buffer_store_dwordx2 {v(PK+t*8+4,2)}, v7, s[44:47], s32 offen offset:3072')
        else:
            for t in range(2):
                P, Q = 88+t, 90+t
                firstp = True
                for j in range(ntile):
                    for k in range(4):
                        a0 = ACC + 16*t + 4*j + k
                        if firstp:
                            A(f'v_mov_b32 {v(P)}, {v(a0)}'); A(f'v_mul_f32 {v(Q)}, {v(a0)}, {v(a0)}'); firstp = False
                        else:
                            A(f'v_add_f32 {v(P)}, {v(P)}, {v(a0)}'); A(f'v_fmac_f32 {v(Q)}, {v(a0)}, {v(a0)}')
            for P in (88, 90):
                A(f'v_permlane32_swap_b32 {v(P)}, {v(P+1)}')
                A(f'v_add_f32 {v(P)}, {v(P)}, {v(P+1)}'); A(f'v_mov_b32 {v(P+1)}, {v(P)}')
                A(f'v_permlane16_swap_b32 {v(P)}, {v(P+1)}')
                A(f'v_add_f32 {v(P)}, {v(P)}, {v(P+1)}')
            srd(A, 44, 4, WS_STAT2, 2048*8)
            srd(A, 48, 4, WS_Z2, 56*64*1024)
            A('v_lshrrev_b32 v6, 5, v1'); A('v_lshl_add_u32 v6, v6, 4, v4'); A('v_lshlrev_b32 v6, 3, v6')
            A('s_lshl_b32 s19, s12, 7'); A('s_lshl_b32 s32, s17, 5'); A('s_add_u32 s19, s19, s32'); A('s_lshl_b32 s19, s19, 3')
            A('s_mov_b32 exec_lo, 0xffff'); A('s_mov_b32 exec_hi, 0xffff')
            A('buffer_atomic_add_f32 v88, v6, s[44:47], s19 offen')
            A('buffer_atomic_add_f32 v90, v6, s[44:47], s19 offen offset:4')
            A('s_mov_b64 exec, -1')
            A('s_lshl_b32 s19, s8, 12'); A('s_add_u32 s19, s19, 4096')
            A('v_lshlrev_b32 v6, 5, v4'); A('v_lshl_add_u32 v6, v3, 3, v6'); A('v_add_u32 v6, s19, v6')
            for t in range(2):
                for j in range(ntile):
                    A(f'ds_write_b64 v6, {v(PK+(t*4+j)*2,2)} offset:{j*1024 + t*512}')
            A('v_bfe_u32 v7, v1, 2, 2'); A('v_lshl_add_u32 v7, v3, 3, v7'); A('v_lshlrev_b32 v7, 5, v7')
            A('v_and_b32 v10, 3, v1'); A('v_lshl_add_u32 v7, v10, 3, v7'); A('v_add_u32 v7, s19, v7')
            A('s_waitcnt lgkmcnt(0)')
            for j in range(ntile):
                A(f'ds_read_b64_tr_b16 {v(96+4*j,2)}, v7 offset:{j*1024}')
                A(f'ds_read_b64_tr_b16 {v(98+4*j,2)}, v7 offset:{j*1024 + 128}')
            A('s_mul_i32 s19, s13, 7'); A('s_lshl_b32 s32, s18, 2'); A('s_add_u32 s19, s19, s32'); A('s_lshl_b32 s19, s19, 6')
            A('s_lshl_b32 s32, s12, 2'); A('s_add_u32 s19, s19, s32'); A('s_add_u32 s19, s19, s17'); A('s_lshl_b32 s19, s19, 10')
            for j in range(ntile):
                A(f's_waitcnt lgkmcnt({2*(ntile-1-j)})')
                A(f's_add_u32 s32, s19, {j*65536}')
                A(f'buffer_store_dwordx4 {v(96+4*j,4)}, v2, s[48:51], s32 offen')
        A('s_endpgm')
    labs = {(n, t): A.newlabel(f'K3_e{n}{t}') for n in (4, 3) for t in (0, 1)}
    A('s_lshl_b32 s19, s18, 1'); A('s_add_u32 s19, s19, s14')
    A('s_cmp_eq_u32 s19, 1'); A(f's_cbranch_scc1 {labs[(4,1)]}')
    A('s_cmp_eq_u32 s19, 2'); A(f's_cbranch_scc1 {labs[(3,0)]}')
    A('s_cmp_eq_u32 s19, 3'); A(f's_cbranch_scc1 {labs[(3,1)]}')
    h0 = list(A.hist)
    epi(4, 0)
    for key in ((4, 1), (3, 0), (3, 1)):
        A.label(labs[key]); A.hist = [list(x) for x in h0]
        epi(*key)
    return dict(name='k3_gemm1_kernel', grid=256, block=512, lds=K3_NSLOT*K3_SLOT, body=A.text(), vgpr=192, sgpr=56)


K4_ZSLOT = 14336
K4_NZ = 8
K4_WP = K4_NZ * K4_ZSLOT
K4_RS = K4_WP + 16384
K4_MU = K4_RS + 8192
K4_COR = K4_MU + 4096
K4_LDS = K4_COR + 256

def gen_k4():
    A = Asm()
    A('s_cmp_lt_u32 s2, 256'); A('s_cbranch_scc1 K4_go'); A('s_endpgm'); A.label('K4_go')
    load_ptr(A, 4, 'ws'); load_ptr(A, 6, 'wsp'); load_ptr(A, 52, 'bsp')
    wave_id(A, 8, 1)
    tile_map_256(A, 9, 10, 11)
    A('s_and_b32 s12, s11, 7'); A('s_lshl_b32 s9, s9, 3'); A('s_add_u32 s12, s12, s9')
    A('s_lshr_b32 s13, s11, 3'); A('s_lshl_b32 s10, s10, 2'); A('s_add_u32 s13, s13, s10')
    A('s_lshr_b32 s14, s8, 2')
    A('s_bfe_u32 s15, s8, 0x10001')
    A('s_and_b32 s16, s8, 1')
    A('v_and_b32 v1, 63, v0'); A('v_lshlrev_b32 v2, 4, v1'); A('v_lshrrev_b32 v3, 4, v1'); A('v_and_b32 v4, 15, v1')
    A('s_waitcnt lgkmcnt(0)')
    srd(A, 20, 4, WS_STAT2, 2048*8)
    A('s_mul_i32 s18, s13, 7'); A('s_lshl_b32 s18, s18, 16'); A(f's_add_u32 s18, s18, {WS_Z2}')
    A('s_add_u32 s24, s4, s18'); A('s_addc_u32 s25, s5, 0'); A(f's_mov_b32 s26, {7*65536}'); A('s_mov_b32 s27, 0x20000')
    A('s_lshl_b32 s18, s12, 6'); A('s_lshl_b32 s19, s8, 3'); A('s_add_u32 s18, s18, s19'); A('s_lshl_b32 s18, s18, 12')
    A('s_add_u32 s28, s6, s18'); A('s_addc_u32 s29, s7, 0'); A('s_mov_b32 s30, 32768'); A('s_mov_b32 s31, 0x20000')
    A('v_lshlrev_b32 v5, 5, v0')
    A('buffer_load_dwordx4 v[8:11], v5, s[20:23], 0 offen')
    A('buffer_load_dwordx4 v[12:15], v5, s[20:23], 0 offen offset:16')
    A('s_lshl_b32 s18, s15, 1'); A('s_add_u32 s18, s18, s16'); A('s_lshl_b32 s19, s12, 2'); A('s_add_u32 s36, s18, s19')
    A('s_lshl_b32 s18, s36, 5'); A('v_lshlrev_b32 v6, 1, v4'); A('v_add_u32 v6, s18, v6')
    A('global_load_ushort v30, v6, s[52:53]')
    srd(A, 40, 4, WS_Z1, 128*8*3584)
    A('s_lshl_b32 s18, s36, 3'); A('s_add_u32 s18, s18, s13'); A('s_mul_i32 s37, s18, 3584')
    A('s_lshl_b32 s18, s14, 11'); A('s_add_u32 s37, s37, s18')
    A('buffer_load_dwordx4 v[32:35], v2, s[40:43], s37 offen')
    A('v_lshlrev_b32 v7, 3, v1')
    lz1 = A.newlabel('K4_z1'); lz2 = A.newlabel('K4_z2')
    A('s_cmp_eq_u32 s14, 1'); A(f's_cbranch_scc1 {lz1}')
    A('buffer_load_dwordx4 v[36:39], v2, s[40:43], s37 offen offset:1024')
    A(f's_branch {lz2}')
    A.label(lz1)
    A('buffer_load_dwordx2 v[36:37], v7, s[40:43], s37 offen offset:1024')
    A.label(lz2)
    A('v_lshrrev_b32 v16, 3, v1'); A('v_and_b32 v17, 7, v1'); A('v_lshlrev_b32 v18, 12, v16'); A('v_lshl_add_u32 v18, v17, 4, v18')
    A('s_mul_i32 s38, s8, 1792')
    for j in range(2):
        A(f'v_add_u32 v5, s38, v2')
        if j: A('v_add_u32 v5, 896, v5')
        A('v_lshrrev_b32 v6, 11, v5'); A('v_and_b32 v5, 2047, v5'); A(f'v_lshl_add_u32 {v(19+j)}, v6, 16, v5')
    A('s_mov_b32 s48, -1'); A('s_mov_b32 s49, 0x00ffffff')
    WR = 40
    def group(k):
        slot = (k % K4_NZ) * K4_ZSLOT
        A('s_mov_b64 exec, s[48:49]')
        for j in range(2):
            A(f's_add_u32 m0, s38, {slot + j*896}')
            A(f'buffer_load_dwordx4 {v(19+j)}, s[24:27], s46 offen lds')
        A('s_mov_b64 exec, -1')
        A(f'buffer_load_dwordx4 {v(WR + 4*(k % 8), 4)}, v18, s[28:31], s47 offen')
        A('s_add_u32 s46, s46, 2048'); A('s_add_u32 s47, s47, 128')
    A('s_mov_b32 s46, 0'); A('s_mov_b32 s47, 0')
    for k in range(8): group(k)
    A('s_lshl_b32 s18, s8, 3'); A('v_add_u32 v5, s18, v16'); A('v_bfe_u32 v6, v5, 1, 3'); A('v_xor_b32 v6, v6, v17')
    A('v_lshlrev_b32 v6, 4, v6'); A('v_lshl_add_u32 v6, v5, 7, v6'); A(f'v_add_u32 v21, {K4_WP}, v6')
    A('s_lshl_b32 s18, s14, 13'); A('s_lshl_b32 s19, s16, 10'); A('s_add_u32 s18, s18, s19'); A('v_add_u32 v22, s18, v2')
    A(f'v_add_u32 v31, {4*K4_ZSLOT}, v22')
    A('s_lshl_b32 s18, s16, 2'); A('v_add_u32 v5, s18, v3'); A('v_bfe_u32 v6, v4, 1, 3'); A('v_xor_b32 v5, v5, v6')
    A('v_lshlrev_b32 v5, 4, v5'); A('v_lshl_add_u32 v5, v4, 7, v5'); A('s_lshl_b32 s18, s15, 12'); A(f's_add_u32 s18, s18, {K4_WP}')
    A('v_add_u32 v23, s18, v5')
    A(f'v_lshlrev_b32 v24, 5, v17'); A(f'v_add_u32 v24, {K4_RS}, v24')
    A(f'v_lshlrev_b32 v25, 4, v17'); A(f'v_add_u32 v25, {K4_MU}, v25')
    A('v_mov_b32 v26, 0')
    A(f's_mov_b32 s44, {f32(1.0/896)}'); A(f's_mov_b32 s45, {f32(1e-5)}')
    A('s_waitcnt vmcnt(27)')
    for e in range(4):
        m, q = 8+2*e, 9+2*e
        A(f'v_mul_f32 {v(m)}, s44, {v(m)}'); A(f'v_mul_f32 {v(q)}, s44, {v(q)}')
        A(f'v_fma_f32 {v(q)}, -{v(m)}, {v(m)}, {v(q)}'); A(f'v_max_f32 {v(q)}, 0, {v(q)}'); A(f'v_add_f32 {v(q)}, s45, {v(q)}')
        A(f'v_rsq_f32 {v(164+e)}, {v(q)}')
    A('v_cvt_pk_bf16_f32 v168, v8, v10'); A('v_cvt_pk_bf16_f32 v169, v12, v14')
    A('v_lshlrev_b32 v5, 4, v0'); A('v_lshlrev_b32 v6, 3, v0')
    A(f'v_add_u32 v5, {K4_RS}, v5'); A(f'v_add_u32 v6, {K4_MU}, v6')
    A('ds_write_b128 v5, v[164:167]'); A('ds_write_b64 v6, v[168:169]')
    A('s_waitcnt lgkmcnt(0)'); A('s_barrier')
    TB = 152; SC = 164
    def tables(st, rel):
        return [f'ds_read_b128 {v(TB,4)}, v24 offset:{rel*256}', f'ds_read_b128 {v(TB+4,4)}, v24 offset:{rel*256+16}',
                f'ds_read_b128 {v(TB+8,4)}, v25 offset:{rel*128}']
    def scale(st):
        w = WR + 4*(st % 8)
        out = []
        for j in range(4):
            out.append(f'v_lshlrev_b32 {v(SC+2*j)}, 16, {v(w+j)}'); out.append(f'v_and_b32 {v(SC+2*j+1)}, 0xffff0000, {v(w+j)}')
        for e in range(8): out.append(f'v_mul_f32 {v(SC+e)}, {v(SC+e)}, {v(TB+e)}')
        for j in range(4): out.append(f'v_cvt_pk_bf16_f32 {v(SC+8+j)}, {v(SC+2*j)}, {v(SC+2*j+1)}')
        for j in range(4): out.append(f'v_dot2_f32_bf16 v26, {v(SC+8+j)}, {v(TB+8+j)}, v26')
        out.append(f'ds_write_b128 v21, {v(SC+8,4)} offset:{(st & 1)*8192}')
        return out
    ACC = 72
    FR = [104, 128]
    def frags(st, ntile):
        slot = st % K4_NZ
        base = FR[st & 1]
        vb, so = (22, slot*K4_ZSLOT) if slot < 4 else (31, (slot-4)*K4_ZSLOT)
        out = [f'ds_read_b128 {v(base+4*j,4)}, {v(vb)} offset:{so + j*2048}' for j in range(ntile)]
        out += [f'ds_read_b128 {v(base+16+4*i,4)}, v23 offset:{(st & 1)*8192 + i*2048}' for i in range(2)]
        return out
    for st in range(2):
        for t_ in tables(st, st): A(t_)
        A(f's_waitcnt vmcnt({21 - 3*st}) lgkmcnt(0)')
        for x_ in scale(st): A(x_)
    for t_ in tables(2, 2): A(t_)
    A('s_waitcnt lgkmcnt(0)'); A('s_barrier')
    def body(ntile):
        for r_ in frags(0, ntile): A(r_)
        first = [[True]*4, [True]*4]
        def iteration(i, u, tail):
            if tail: A(f's_waitcnt vmcnt({max(0, 3*(29-i))}) lgkmcnt(0)')
            else: A('s_waitcnt vmcnt(15) lgkmcnt(0)')
            A('s_barrier')
            if not tail: group(u)
            rd = frags(u+1, ntile) if (not tail or i + 1 <= 31) else []
            sc = scale(u+2) if (not tail or i + 2 <= 31) else []
            tb = tables(0, u+3) if (not tail or i + 3 <= 31) else []
            base = FR[u & 1]
            mf = []
            for j in range(ntile):
                for t in range(2):
                    acc = v(ACC+16*t+4*j,4)
                    mf.append((acc, f'v_mfma_f32_16x16x32_bf16 {acc}, {v(base+4*j,4)}, {v(base+16+4*t,4)}, {acc}'))
            for r_ in rd: A(r_)
            per = (len(sc) + len(mf) - 1) // len(mf)
            si = 0
            for acc, m_ in mf:
                A(m_)
                for _ in range(per):
                    if si < len(sc): A(sc[si]); si += 1
            while si < len(sc): A(sc[si]); si += 1
            for t_ in tb: A(t_)
        for k in range(32): A(f'v_mov_b32 {v(ACC+k)}, 0')
        lab = A.newlabel('K4_loop')
        A('s_mov_b32 s50, 0')
        A.label(lab)
        for u in range(8): iteration(u, u, False)
        A('v_add_u32 v24, 2048, v24'); A('v_add_u32 v25, 1024, v25')
        A('s_add_u32 s50, s50, 1'); A('s_cmp_lt_u32 s50, 3'); A(f's_cbranch_scc1 {lab}')
        for u in range(8): iteration(24+u, u, True)
        A.pad(8)
        A('s_barrier')
        A('s_lshl_b32 s18, s8, 12'); A('v_add_u32 v5, s18, v2')
        A('s_xor_b32 s18, s8, 1'); A('s_lshl_b32 s18, s18, 12'); A('v_add_u32 v6, s18, v2')
        lk1 = A.newlabel('K4_k1'); lk2 = A.newlabel('K4_k2')
        A('s_cmp_eq_u32 s16, 1'); A(f's_cbranch_scc1 {lk1}')
        for j in range(ntile): A(f'ds_write_b128 v5, {v(ACC+16+4*j,4)} offset:{j*1024}')
        A(f's_branch {lk2}')
        A.label(lk1)
        for j in range(ntile): A(f'ds_write_b128 v5, {v(ACC+4*j,4)} offset:{j*1024}')
        for k in range(4*ntile): A(f'v_mov_b32 {v(ACC+k)}, {v(ACC+16+k)}')
        A.label(lk2)
        A('v_add_f32_dpp v26, v26, v26 quad_perm:[1,0,3,2] row_mask:0xf bank_mask:0xf')
        A('v_add_f32_dpp v26, v26, v26 quad_perm:[2,3,0,1] row_mask:0xf bank_mask:0xf')
        A('v_add_f32_dpp v26, v26, v26 row_half_mirror row_mask:0xf bank_mask:0xf')
        A('s_lshl_b32 s18, s8, 3'); A('v_add_u32 v7, s18, v16'); A('v_lshlrev_b32 v7, 2, v7'); A(f'v_add_u32 v7, {K4_COR}, v7')
        A('ds_write_b32 v7, v26')
        A('s_waitcnt lgkmcnt(0)'); A('s_barrier')
        for j in range(ntile): A(f'ds_read_b128 {v(104+4*j,4)}, v6 offset:{j*1024}')
        A('s_lshl_b32 s18, s15, 5'); A('s_lshl_b32 s19, s16, 4'); A('s_add_u32 s18, s18, s19'); A('v_add_u32 v7, s18, v4')
        A('v_lshlrev_b32 v7, 2, v7'); A(f'v_add_u32 v7, {K4_COR}, v7')
        A('ds_read_b32 v27, v7')
        A('v_lshlrev_b32 v30, 16, v30')
        A('s_waitcnt lgkmcnt(0)')
        A('v_sub_f32 v30, v30, v27')
        for j in range(ntile):
            a0 = ACC + 4*j
            for k in range(4): A(f'v_add_f32 {v(a0+k)}, {v(a0+k)}, {v(104+4*j+k)}')
            for k in range(4): A(f'v_add_f32 {v(a0+k)}, {v(a0+k)}, v30')
            z = 32 + 2*j
            unpack_lo(A, 120, z); unpack_hi(A, 121, z); unpack_lo(A, 122, z+1); unpack_hi(A, 123, z+1)
            for k in range(4): A(f'v_mul_f32 {v(a0+k)}, {v(a0+k)}, {v(120+k)}')
            A(f'v_cvt_pk_bf16_f32 {v(128+2*j)}, {v(a0)}, {v(a0+1)}'); A(f'v_cvt_pk_bf16_f32 {v(129+2*j)}, {v(a0+2)}, {v(a0+3)}')
        srd(A, 40, 4, WS_P, 128*28*1024)
        A('v_and_b32 v5, 1, v3'); A('v_lshlrev_b32 v5, 1, v5'); A('v_lshrrev_b32 v6, 1, v3'); A('v_or_b32 v5, v5, v6')
        A('v_lshlrev_b32 v5, 8, v5'); A('v_lshl_add_u32 v5, v4, 4, v5')
        A('s_mul_i32 s18, s36, 28'); A('s_mul_i32 s19, s13, 3'); A('s_add_u32 s19, s19, s18'); A('s_lshl_b32 s37, s14, 1'); A('s_add_u32 s19, s19, s37')
        A('s_lshl_b32 s19, s19, 10')
        for pr in range(ntile // 2):
            r0 = 128 + 4*pr
            A(f'v_permlane16_swap_b32 {v(r0)}, {v(r0+2)}'); A(f'v_permlane16_swap_b32 {v(r0+1)}, {v(r0+3)}')
            A(f'buffer_store_dwordx4 {v(r0,4)}, v5, s[40:43], s19 offen offset:{pr*1024}')
        if ntile == 3:
            A('s_lshr_b32 s19, s13, 1'); A('s_add_u32 s19, s19, 24'); A('s_add_u32 s19, s19, s18'); A('s_lshl_b32 s19, s19, 10')
            A('s_and_b32 s37, s13, 1'); A('s_lshl_b32 s37, s37, 9'); A('s_add_u32 s19, s19, s37')
            A('v_lshrrev_b32 v6, 1, v3'); A('v_lshlrev_b32 v6, 8, v6'); A('v_lshl_add_u32 v6, v4, 4, v6')
            A('v_and_b32 v7, 1, v3'); A('v_lshl_add_u32 v6, v7, 3, v6')
            A('buffer_store_dwordx2 v[132:133], v6, s[40:43], s19 offen')
        A('s_endpgm')
    lf1 = A.newlabel('K4_f1')
    A('s_cmp_eq_u32 s14, 1'); A(f's_cbranch_scc1 {lf1}')
    h0 = [list(x) for x in A.hist]
    body(4)
    A.label(lf1); A.hist = h0
    body(3)
    return dict(name='k4_gemm2_kernel', grid=256, block=512, lds=K4_LDS, body=A.text(), vgpr=180, sgpr=56)

K5_SLOT = 16384
K5_NS = 9
K5_X = K5_NS * K5_SLOT
K5_LDS = K5_X + 8192

def gen_k5():
    A = Asm()
    A('s_cmp_lt_u32 s2, 256'); A('s_cbranch_scc1 K5_go'); A('s_endpgm'); A.label('K5_go')
    load_ptr(A, 4, 'ws'); load_ptr(A, 6, 'out')
    wave_id(A, 8, 1)
    tile_map_256(A, 9, 10, 11)
    A('s_and_b32 s12, s11, 7'); A('s_lshl_b32 s9, s9, 3'); A('s_add_u32 s12, s12, s9')
    A('s_lshr_b32 s13, s11, 3'); A('s_lshl_b32 s10, s10, 2'); A('s_add_u32 s13, s13, s10')
    A('s_and_b32 s14, s8, 1')
    A('s_bfe_u32 s15, s8, 0x10001')
    A('s_lshr_b32 s16, s8, 2')
    A('v_and_b32 v1, 63, v0'); A('v_lshlrev_b32 v2, 4, v1'); A('v_lshrrev_b32 v3, 4, v1'); A('v_and_b32 v4, 15, v1')
    A('s_waitcnt lgkmcnt(0)')
    A('s_and_b32 s17, s8, 3')
    A('s_lshl_b32 s18, s12, 2'); A('s_lshl_b32 s19, s13, 2')
    A(f's_mov_b32 s38, {WS_WO}'); A(f's_mov_b32 s39, {WS_P}')
    A('s_cmp_ge_u32 s8, 4'); A('s_cselect_b32 s18, s19, s18'); A('s_cselect_b32 s19, s38, s39')
    A('s_add_u32 s18, s18, s17'); A('s_mul_i32 s18, s18, 28672'); A('s_add_u32 s18, s18, s19')
    A('s_add_u32 s20, s4, s18'); A('s_addc_u32 s21, s5, 0'); A('s_mov_b32 s22, 28672'); A('s_mov_b32 s23, 0x20000')
    srd(A, 24, 4, WS_X1T, 2048*1024)
    srd(A, 28, 4, WS_MOD, 3072*4)
    srd(A, 32, 6, 0, 2048*1024)
    A('s_lshl_b32 s18, s13, 8'); A('s_lshl_b32 s19, s15, 7'); A('s_add_u32 s18, s18, s19'); A(f's_add_u32 s18, s18, {5*2048}')
    A('v_lshlrev_b32 v5, 4, v3')
    A('buffer_load_dwordx4 v[8:11], v5, s[28:31], s18 offen')
    A('buffer_load_dwordx4 v[12:15], v5, s[28:31], s18 offen offset:64')
    A('v_lshrrev_b32 v6, 3, v1'); A('v_and_b32 v7, 7, v1'); A('v_lshlrev_b32 v6, 12, v6'); A('v_lshl_add_u32 v6, v7, 4, v6')
    A('s_lshl_b32 s18, s13, 6'); A('s_lshl_b32 s19, s8, 3'); A('s_add_u32 s18, s18, s19'); A('s_lshl_b32 s18, s18, 12')
    A('s_lshl_b32 s19, s12, 7'); A('s_add_u32 s18, s18, s19')
    A('s_lshl_b32 s19, s8, 10'); A(f's_add_u32 m0, s19, {K5_X}')
    A('buffer_load_dwordx4 v6, s[24:27], s18 offen lds')
    A('s_lshl_b32 s36, s8, 10')
    def dma(stage):
        slot = (stage % K5_NS) * K5_SLOT
        for j in range(2):
            A(f's_add_u32 m0, s36, {slot + j*8192}')
            A(f's_mov_b32 s37, {(2*stage+j)*1024}')
            A('buffer_load_dwordx4 v2, s[20:23], s37 offen lds')
    for st in range(9): dma(st)
    A('s_lshl_b32 s18, s16, 13'); A('s_lshl_b32 s19, s14, 11'); A('s_add_u32 s19, s19, s18'); A('v_add_u32 v16, s19, v2')
    A('s_lshl_b32 s19, s15, 11'); A('s_add_u32 s19, s19, s18'); A('s_add_u32 s19, s19, 4096'); A('v_add_u32 v17, s19, v2')
    ACC = 32; FR = [48, 64]
    def frags(st):
        slot = (st % K5_NS) * K5_SLOT
        base = FR[st & 1]
        A(f'v_add_u32 v18, {slot}, v16'); A(f'v_add_u32 v19, {slot}, v17')
        return [f'ds_read_b128 {v(base+4*i,4)}, v18 offset:{i*1024}' for i in range(2)] + \
               [f'ds_read_b128 {v(base+8+4*i,4)}, v19 offset:{i*1024}' for i in range(2)]
    A('s_waitcnt vmcnt(16)'); A('s_barrier')
    for r_ in frags(0): A(r_)
    NST = 14
    for i in range(NST):
        if i < NST - 1:
            issued = min(i + 8, NST - 1)
            A(f's_waitcnt vmcnt({2*(issued-(i+1))}) lgkmcnt(0)'); A('s_barrier')
            if i + 9 <= NST - 1: dma(i + 9)
            rd = frags(i+1)
        else:
            A('s_waitcnt lgkmcnt(0)'); rd = []
        base = FR[i & 1]
        for r_ in rd: A(r_)
        for d in range(2):
            for t in range(2):
                acc = v(ACC + 8*t + 4*d, 4)
                A(f'v_mfma_f32_16x16x32_bf16 {acc}, {v(base+8+4*d,4)}, {v(base+4*t,4)}, {"0" if i == 0 else acc}')
    A.pad(8)
    A('s_barrier')
    A('s_lshl_b32 s18, s8, 11'); A('v_add_u32 v5, s18, v2')
    A('s_xor_b32 s18, s8, 4'); A('s_lshl_b32 s18, s18, 11'); A('v_add_u32 v6, s18, v2')
    lk1 = A.newlabel('K5_k1'); lk2 = A.newlabel('K5_k2')
    A('s_cmp_eq_u32 s16, 1'); A(f's_cbranch_scc1 {lk1}')
    for d in range(2): A(f'ds_write_b128 v5, {v(ACC+8+4*d,4)} offset:{d*1024}')
    A(f's_branch {lk2}')
    A.label(lk1)
    for d in range(2): A(f'ds_write_b128 v5, {v(ACC+4*d,4)} offset:{d*1024}')
    for k in range(8): A(f'v_mov_b32 {v(ACC+k)}, {v(ACC+8+k)}')
    A.label(lk2)
    A('s_waitcnt lgkmcnt(0)'); A('s_barrier')
    for d in range(2): A(f'ds_read_b128 {v(48+4*d,4)}, v6 offset:{d*1024}')
    A('v_bfe_u32 v7, v1, 2, 2'); A('v_lshl_add_u32 v7, v3, 2, v7'); A('v_lshlrev_b32 v7, 7, v7')
    A('v_and_b32 v18, 3, v1'); A('v_lshl_add_u32 v7, v18, 3, v7')
    A('s_lshl_b32 s18, s15, 12'); A('s_lshl_b32 s19, s14, 6'); A('s_add_u32 s18, s18, s19'); A('s_lshl_b32 s19, s16, 5'); A('s_add_u32 s18, s18, s19')
    A(f's_add_u32 s18, s18, {K5_X}'); A('v_add_u32 v7, s18, v7')
    for d in range(2): A(f'ds_read_b64_tr_b16 {v(56+2*d,2)}, v7 offset:{d*2048}')
    A('s_waitcnt lgkmcnt(0)')
    for d in range(2):
        a0 = ACC + 4*d
        for k in range(4): A(f'v_add_f32 {v(a0+k)}, {v(a0+k)}, {v(48+4*d+k)}')
        unpack_lo(A, 60, 56+2*d); unpack_hi(A, 61, 56+2*d); unpack_lo(A, 62, 57+2*d); unpack_hi(A, 63, 57+2*d)
        for k in range(4): A(f'v_fma_f32 {v(a0+k)}, {v(a0+k)}, {v(8+4*d+k)}, {v(60+k)}')
        A(f'v_cvt_pk_bf16_f32 {v(64+2*d)}, {v(a0)}, {v(a0+1)}'); A(f'v_cvt_pk_bf16_f32 {v(65+2*d)}, {v(a0+2)}, {v(a0+3)}')
    OP = 144
    A('s_lshl_b32 s18, s14, 5'); A('s_lshl_b32 s19, s16, 4'); A('s_add_u32 s18, s18, s19'); A('v_add_u32 v5, s18, v4')
    A(f'v_mul_u32_u24 v5, {OP}, v5'); A('v_lshl_add_u32 v5, v3, 3, v5'); A('s_lshl_b32 s18, s15, 6'); A('s_add_u32 s18, s18, 32768')
    A('v_add_u32 v5, s18, v5')
    for d in range(2): A(f'ds_write_b64 v5, {v(64+2*d,2)} offset:{d*32}')
    A('s_waitcnt lgkmcnt(0)'); A('s_barrier')
    A('v_lshrrev_b32 v6, 3, v1'); A('s_lshl_b32 s18, s8, 3'); A('v_add_u32 v6, s18, v6'); A('v_and_b32 v7, 7, v1')
    A(f'v_mul_u32_u24 v5, {OP}, v6'); A('v_lshl_add_u32 v5, v7, 4, v5')
    A('ds_read_b128 v[68:71], v5 offset:32768')
    A('v_lshlrev_b32 v6, 10, v6'); A('v_lshl_add_u32 v6, v7, 4, v6')
    A('s_lshl_b32 s18, s12, 16'); A('s_lshl_b32 s19, s13, 7'); A('s_add_u32 s18, s18, s19')
    A('s_waitcnt lgkmcnt(0)')
    A('buffer_store_dwordx4 v[68:71], v6, s[32:35], s18 offen')
    A('s_endpgm')
    return dict(name='k5_gemm3_kernel', grid=256, block=512, lds=K5_LDS, body=A.text(), vgpr=80, sgpr=48)

def main(path, upto=5):
    ks = [gen_k1()]
    g = globals()
    for i in range(2, upto + 1):
        if f'gen_k{i}' in g: ks.append(g[f'gen_k{i}']())
    hdr = open('cdna_kernels/' + NAME + '.s.ref').read().split('; Override launch')[0]
    open(path, 'w').write(assemble_file(ks, header=hdr))

if __name__ == '__main__':
    main(sys.argv[1] if len(sys.argv) > 1 else 'out.s')
```
